```python
import torch

def _softmax(x, axis=-1):
    return torch.softmax(x, dim=axis)

def _gelu(x):
    return torch.nn.functional.gelu(x, approximate='tanh')

def _silu(x):
    return torch.nn.functional.silu(x)

def _sigmoid(x):
    return torch.sigmoid(x)

def _layernorm(x, axis=-1, eps=1e-05):
    m = x.mean(dim=axis, keepdim=True)
    v = x.var(dim=axis, keepdim=True, unbiased=False)
    return (x - m) / torch.sqrt(v + eps)

def _scatter_add(tgt, idx, src, axis=0):
    return tgt.clone().index_add_(axis, idx, src)

def _segment_sum(src, seg, n):
    out = torch.zeros((n,) + src.shape[1:], dtype=src.dtype)
    return out.index_add_(0, seg, src)

def _pad(x, pw):
    flat = tuple((v for pair in reversed(pw) for v in pair))
    return torch.nn.functional.pad(x, flat)
kernel_name = 'adaLN_cond__spectral_fnet__moe_arch_mod__prompt'

def setup_inputs():

    _w = lambda a: (lambda t: t.to(torch.bfloat16) if t.is_floating_point() else t)(torch.as_tensor(a))

    def _A_setup():
        B, S, D = (1, 2048, 448)
        ns = torch.arange(S)[:, None] * torch.arange(S)[None, :]
        nd = torch.arange(D)[:, None] * torch.arange(D)[None, :]
        Ws_re = torch.cos(-2.0 * torch.pi * ns / S).to(float)
        Ws_im = torch.sin(-2.0 * torch.pi * ns / S).to(float)
        Wd_re = torch.cos(-2.0 * torch.pi * nd / D).to(float)
        Wd_im = torch.sin(-2.0 * torch.pi * nd / D).to(float)
        return {'x': _w((lambda *s: torch.randn(*s, dtype=torch.bfloat16) * 0.05)(B, S, D)), 'dft_seq_re': _w(Ws_re), 'dft_seq_im': _w(Ws_im), 'dft_hid_re': _w(Wd_re), 'dft_hid_im': _w(Wd_im)}
    _A_in = _A_setup()

    def _B_setup():
        B, S, D, F, C = (1, 2048, 448, 1792, 1)
        return {'x': _w((lambda *s: torch.randn(*s, dtype=torch.bfloat16) * 0.05)(B, S, D)), 'w_r': _w((lambda *s: torch.randn(*s, dtype=torch.bfloat16) * 3.2)(D)), 'w_gate': _w((lambda *s: torch.randn(*s, dtype=torch.bfloat16) * 0.8)(D, F)), 'w_up': _w((lambda *s: torch.randn(*s, dtype=torch.bfloat16) * 0.8)(D, F)), 'w_down': _w((lambda *s: torch.randn(*s, dtype=torch.bfloat16) * 0.8)(F, D))}
    _B_in = _B_setup()
    return {'A_x': _A_in['x'], 'A_dft_seq_re': _A_in['dft_seq_re'], 'A_dft_seq_im': _A_in['dft_seq_im'], 'A_dft_hid_re': _A_in['dft_hid_re'], 'A_dft_hid_im': _A_in['dft_hid_im'], 'B_x': _B_in['x'], 'B_w_r': _B_in['w_r'], 'B_w_gate': _B_in['w_gate'], 'B_w_up': _B_in['w_up'], 'B_w_down': _B_in['w_down'], 'c': _w((lambda *s: torch.randn(*s, dtype=torch.bfloat16) * 0.1)(1, 448) * 8.0), 'w_mod': _w((lambda *s: torch.randn(*s, dtype=torch.bfloat16) * 0.1)(448, 6 * 448) * 448 ** (-0.5) * 8.0)}

def reference(A_x, A_dft_seq_re, A_dft_seq_im, A_dft_hid_re, A_dft_hid_im, B_x, B_w_r, B_w_gate, B_w_up, B_w_down, c, w_mod):

    def _A_ref(x, dft_seq_re, dft_seq_im, dft_hid_re, dft_hid_im):
        a = torch.einsum('bsd,ed->bse', x, dft_hid_re)
        b = torch.einsum('bsd,ed->bse', x, dft_hid_im)
        y = torch.einsum('ts,bse->bte', dft_seq_re, a) - torch.einsum('ts,bse->bte', dft_seq_im, b)
        return y

    def _B_ref(x, w_r, w_gate, w_up, w_down):
        B, S, D = x.shape
        C = 1
        r = x @ w_r
        idx = torch.argsort(-r, axis=-1)[:, :C]
        idx_e = (lambda x, n, axis: torch.repeat_interleave(x, n, dim=axis))(idx.reshape(B, C, 1), D, axis=2)
        x_sel = (lambda x, i, axis: torch.take_along_dim(x, i, dim=axis))(x, idx_e, axis=1)
        g = _silu(x_sel @ w_gate)
        u = x_sel @ w_up
        y = g * u @ w_down
        r_sel = _sigmoid((lambda x, i, axis: torch.take_along_dim(x, i, dim=axis))(r, idx, axis=1))
        y = y * r_sel.reshape(B, C, 1)
        b_off = (torch.arange(B) * S).reshape(B, 1)
        flat_idx = (idx + b_off).reshape(B * C)
        zero = (x * 0.0).reshape(B * S, D)
        upd = _scatter_add(zero, flat_idx, y.reshape(B * C, D), axis=0)
        return x + upd.reshape(B, S, D)
    x = A_x
    mod = (_silu(c) @ w_mod).reshape(c.shape[0], 6, 1, -1)
    sa, ca, ga, sb, cb, gb = (mod[:, 0].clone(), mod[:, 1].clone(), mod[:, 2].clone(), mod[:, 3].clone(), mod[:, 4].clone(), mod[:, 5].clone())
    h = _layernorm(x, axis=-1) * (1 + ca) + sa
    x = x + ga * _A_ref(h, A_dft_seq_re, A_dft_seq_im, A_dft_hid_re, A_dft_hid_im)
    h = _layernorm(x, axis=-1) * (1 + cb) + sb
    x = x + gb * _B_ref(h, B_w_r, B_w_gate, B_w_up, B_w_down)
    return x
```

```python
import re

def _regs(tok):
    tok = tok.strip()
    neg = tok.lstrip('-')
    if neg.startswith('abs(') or neg.startswith('|'):
        neg = neg.replace('abs(', '').replace(')', '').replace('|', '')
    tok = neg
    m = re.fullmatch(r'([vsa])\[(\d+):(\d+)\]', tok)
    if m:
        return [(m.group(1), i) for i in range(int(m.group(2)), int(m.group(3)) + 1)]
    m = re.fullmatch(r'([vsa])(\d+)', tok)
    if m:
        return [(m.group(1), int(m.group(2)))]
    if tok == 'vcc':
        return [('s', 'vcc_lo'), ('s', 'vcc_hi')]
    if tok in ('vcc_lo', 'vcc_hi'):
        return [('s', tok)]
    if tok == 'exec':
        return [('x', 'exec')]
    if tok in ('exec_lo', 'exec_hi'):
        return [('x', 'exec')]
    if tok == 'm0':
        return [('m', 'm0')]
    return []

TRANS = ('v_exp_f32', 'v_log_f32', 'v_rcp_f32', 'v_rsq_f32', 'v_sqrt_f32', 'v_sin_f32', 'v_cos_f32')

class Ins:
    def __init__(self, text):
        self.text = text
        t = text.split(';')[0].strip()
        self.is_label = t.endswith(':')
        self.is_dir = t.startswith('.') and not self.is_label
        self.mn = ''
        self.w = set(); self.r = set()
        self.srcC = set(); self.srcAB = set(); self.data = set()
        self.scalar_src = set()
        if self.is_label or self.is_dir or not t:
            self.kind = 'none'; return
        parts = t.split(None, 1)
        self.mn = mn = parts[0]
        rest = parts[1] if len(parts) > 1 else ''
        ops = []; cur = ''; depth = 0
        for ch in rest:
            if ch in '[(' : depth += 1
            if ch in '])' : depth -= 1
            if ch == ',' and depth == 0:
                ops.append(cur.strip()); cur = ''
            else:
                cur += ch
        if cur.strip(): ops.append(cur.strip())
        mods = ''
        if ops:
            last = ops[-1].split(None, 1)
            ops[-1] = last[0]
            mods = last[1] if len(last) > 1 else ''
        self.ops = ops; self.mods = mods
        self.dpp = mn.endswith('_dpp') or 'row_' in mods or 'quad_perm' in mods
        R = lambda k: set(_regs(ops[k])) if k < len(ops) else set()
        allr = lambda ks: set().union(*[R(k) for k in ks]) if ks else set()
        n = len(ops)
        if mn.startswith('v_mfma'):
            self.kind = 'mfma'
            self.w = R(0); self.srcAB = R(1) | R(2); self.srcC = R(3); self.r = self.srcAB | self.srcC
            self.passes = 8 if '32x32' in mn else 4
        elif mn.startswith('v_'):
            self.kind = 'valu'
            if mn.startswith('v_cmp'):
                self.w = R(0); self.r = allr(range(1, n))
                if mn.startswith('v_cmpx'): self.w |= {('x', 'exec')}
            elif mn.startswith(('v_readlane', 'v_readfirstlane')):
                self.w = R(0); self.r = allr(range(1, n))
            elif mn.startswith('v_permlane') and 'swap' in mn:
                self.w = R(0) | R(1); self.r = R(0) | R(1)
            elif mn.startswith(('v_add_co', 'v_sub_co', 'v_addc_co', 'v_subb_co')):
                self.w = R(0) | R(1); self.r = allr(range(2, n))
            else:
                self.w = R(0); self.r = allr(range(1, n))
                if mn.startswith(('v_fmac', 'v_dot2c', 'v_writelane')) or self.dpp:
                    self.r |= R(0)
            self.trans = mn.replace('_e32', '').replace('_e64', '') in TRANS
        elif mn.startswith(('buffer_', 'global_')):
            self.kind = 'vmem'
            if 'lds' in mods.split() or mn.startswith('global_load_lds'):
                self.r = allr(range(n)) | {('m', 'm0')}
                self.ldsdma = True
            elif '_load' in mn:
                self.w = R(0); self.r = allr(range(1, n))
            elif '_atomic' in mn:
                self.r = allr(range(n))
                if 'sc0' in mods.split(): self.w = R(0)
            else:
                self.r = allr(range(n))
                if mn.startswith('buffer_store'): self.data = R(0)
                elif mn.startswith('global_store'): self.data = R(1)
        elif mn.startswith('ds_'):
            self.kind = 'ds'
            if mn.startswith(('ds_read', 'ds_bpermute', 'ds_permute', 'ds_swizzle')):
                self.w = R(0); self.r = allr(range(1, n))
            else:
                self.r = allr(range(n))
        elif mn.startswith('s_'):
            self.kind = 'salu'
            if mn.startswith(('s_cmp', 's_cbranch', 's_branch', 's_waitcnt', 's_nop', 's_barrier', 's_endpgm', 's_sleep', 's_setprio', 's_bitcmp')):
                self.r = allr(range(n))
            else:
                self.w = R(0); self.r = allr(range(1, n))
                if 'saveexec' in mn: self.w |= {('x', 'exec')}
        else:
            raise ValueError('unknown instr: ' + text)

    def states(self):
        if self.kind == 'none': return 0
        if self.mn == 's_nop': return int(self.ops[0], 0) + 1
        return 1

def need(p, c):
    n = 0
    vw = {x for x in p.w if x[0] in 'va'}
    sw = {x for x in p.w if x[0] == 's'}
    if p.kind == 'valu':
        if c.kind == 'mfma' and vw & c.r: n = max(n, 2)
        if c.kind == 'valu' and c.dpp and vw & c.r: n = max(n, 2)
        if c.kind == 'valu' and c.mn.startswith('v_permlane') and vw & c.r: n = max(n, 2)
        if c.kind == 'valu' and c.mn.startswith(('v_readlane', 'v_readfirstlane')) and vw & c.r: n = max(n, 1)
        if getattr(p, 'trans', False) and c.kind in ('valu', 'mfma') and vw & c.r: n = max(n, 1)
        if p.mn.startswith('v_dot') and c.kind in ('valu', 'mfma', 'vmem', 'ds') and vw & (c.r | c.w):
            if c.mn == p.mn and not (vw & (set(_regs(c.ops[1])) | set(_regs(c.ops[2])))): pass
            else: n = max(n, 3)
        if 'sdwa' in p.mn and c.kind == 'valu' and vw & (c.r | c.w): n = max(n, 1)
        if sw:
            if c.kind == 'valu' and sw & c.r:
                n = max(n, 4 if c.mn.startswith(('v_readlane', 'v_writelane')) else 2)
            if c.kind == 'vmem' and sw & c.r: n = max(n, 5)
            if c.kind == 'salu' and sw & c.r: n = max(n, 1)
        if ('x', 'exec') in p.w:
            if c.kind == 'valu' and c.dpp: n = max(n, 5)
            if c.kind == 'valu' and c.mn.startswith(('v_readlane', 'v_readfirstlane', 'v_writelane', 'v_permlane')): n = max(n, 4)
            if c.kind == 'mfma': n = max(n, 4)
    if p.kind == 'mfma':
        big = {4: 8, 8: 12}[p.passes]
        if c.kind == 'mfma':
            if vw & c.srcAB: n = max(n, big)
            if vw & c.srcC:
                if c.srcC == p.w and c.passes == p.passes: pass
                else: n = max(n, {4: 6, 8: 10}[p.passes])
            elif vw & c.w: n = max(n, big)
        elif c.kind == 'valu':
            if vw & (c.r | c.w): n = max(n, big)
            if p.srcC & c.w: n = max(n, {4: 3, 8: 7}[p.passes])
        elif c.kind in ('vmem', 'ds'):
            if vw & (c.r | c.w): n = max(n, big)
    if p.kind == 'vmem' and p.data and len(p.data) >= 3:
        if p.data & c.w: n = max(n, 2)
    if p.kind == 'salu' and ('m', 'm0') in p.w:
        if c.kind == 'vmem' and getattr(c, 'ldsdma', False): n = max(n, 1)
    return n

class Asm:
    def __init__(self):
        self.lines = []
    def __call__(self, text):
        for ln in text.split('\n'):
            ln = ln.strip()
            if not ln: continue
            if ln.startswith(';'):
                self.lines.append(Ins('')); self.lines[-1].text = ln; continue
            self._emit(Ins(ln))
    def _emit(self, ins):
        if ins.kind != 'none':
            dist = 0; req = 0
            for p in reversed(self.lines):
                if p.kind == 'none': continue
                if p.mn in ('s_branch', 's_endpgm'): break
                k = need(p, ins) - dist
                req = max(req, k)
                dist += p.states()
                if dist >= 24: break
            while req > 0:
                k = min(req, 16)
                self.lines.append(Ins(f's_nop {k-1}'))
                req -= k
        self.lines.append(ins)
    def label(self, name):
        self.lines.append(Ins(name + ':'))
    def text(self):
        out = []
        for i in self.lines:
            out.append(i.text if (i.is_label or i.is_dir) else '    ' + i.text)
        return '\n'.join(out) + '\n'
```

```python
import math, struct
S, D = 2048, 448
KA_X, KA_WR, KA_WG, KA_WU, KA_WD, KA_C, KA_WMOD, KA_OUT, KA_DBG, KA_WS = 0, 48, 56, 64, 72, 80, 88, 96, 104, 112
WS_MOD = 0x1C0000
WS_KEY = 0x1C3000
WS_CAND = 0x1C4000
NCAND = 129
WS_PART = WS_CAND + NCAND * 1792
NMLP = 56
WS_SIZE_USED = 0x220000
SPIN = 1 << 20

def f32(x):
    return "0x%08x" % struct.unpack("<I", struct.pack("<f", x))[0]
def srd(a, dst, base, nbytes):
    a(f"""s_mov_b32 s{dst}, s{base}
    s_and_b32 s{dst+1}, s{base+1}, 0xffff
    s_mov_b32 s{dst+2}, {nbytes}
    s_mov_b32 s{dst+3}, 0x00020000""")
def round_bf16(a, v):
    a(f"v_cvt_pk_bf16_f32 v{v}, v{v}, v{v}")
    a(f"v_lshlrev_b32 v{v}, 16, v{v}")

L_COEF = 0
L_KEY = 12 * 1024
L_TILE = L_KEY + 64
L_XB = L_TILE + 64 * 928
L_END = L_XB + 8 * 684 * 4
M_GU = 0
M_H = 64
M_GATE = 4096
M_UP = 28672
M_DOWN = M_GATE + 57344
assert M_DOWN + 28672 <= L_END

CA1, SA = 8, 24
GA, SB, CB1, GB, WR = 40, 48, 56, 64, 72
XR = 76
P0, P1, Q = 84, 92, 100
T2B, H1A, H2B = 108, 116, 124
TWC, TWS = 156, 166
AOP = 176
ACC = 208
BOP, TMP = 224, 232

def kernel_B(a, opt):
    a.label("kB_kernel")
    a(f"""s_cmp_ge_u32 s2, {NCAND+NMLP}
    s_cbranch_scc1 kB_end
    s_cmp_ge_u32 s2, {NCAND}
    s_cbranch_scc1 kB_mlp
    s_load_dwordx2 s[6:7], s[0:1], {KA_WS}
    s_load_dwordx2 s[4:5], s[0:1], {KA_X}
    s_load_dwordx2 s[16:17], s[0:1], {KA_OUT}
    s_load_dwordx2 s[18:19], s[0:1], {KA_WR}
    v_readfirstlane_b32 s28, v0
    v_and_b32 v1, 63, v0
    v_and_b32 v2, 15, v0
    v_bfe_u32 v3, v0, 4, 2
    v_lshlrev_b32 v242, 4, v1        ; lane*16
    s_lshr_b32 s28, s28, 6           ; wave
    s_and_b32 s29, s2, 7
    s_lshr_b32 s35, s2, 5
    s_and_b32 s35, s35, 3
    s_lshl_b32 s35, s35, 3
    s_add_u32 s29, s29, s35          ; g
    s_bfe_u32 s35, s2, 0x20003       ; qtr
    s_lshl_b32 s30, s35, 9
    s_add_u32 s30, s30, s29
    s_mov_b32 s31, 64
    s_mov_b32 s32, 1.0
    s_mov_b32 s33, 1.0
    s_mov_b32 s34, 0
    s_cmp_lg_u32 s29, 0
    s_cbranch_scc1 kB_ids_done
    s_mov_b32 s33, 0                 ; mode 1
    s_cmp_lt_u32 s35, 2
    s_cbranch_scc1 kB_mode1
    s_sub_u32 s30, s30, {1024-32}
    s_mov_b32 s32, 0
    s_mov_b32 s34, 1.0""")
    a.label("kB_mode1")
    a("""s_cmp_lg_u32 s2, 128
    s_cbranch_scc1 kB_ids_done
    s_movk_i32 s30, 1024
    s_mov_b32 s31, 0""")
    a.label("kB_ids_done")
    a(f"""s_mul_i32 s36, s31, s28
    s_add_u32 s36, s36, s30          ; t
    s_sub_u32 s37, 2048, s36
    s_and_b32 s37, s37, 2047         ; t'
    s_lshl_b32 s38, s29, 6
    s_lshl_b32 s39, s28, 3
    s_add_u32 s38, s38, s39
    s_mul_i32 s38, s38, 896
    s_mul_i32 s39, s39, 928
    s_add_u32 s39, s39, {L_TILE}
    s_waitcnt lgkmcnt(0)""")
    srd(a, 12, 6, WS_SIZE_USED)
    a("s_mov_b32 exec_lo, 0xffffffff\n s_mov_b32 exec_hi, 0xffffff")
    for jj in range(8):
        a(f"""s_mov_b32 m0, s39
        s_add_u32 s39, s39, 928
        buffer_load_dwordx4 v242, s[12:15], s38 offen lds
        s_add_u32 s38, s38, 896""")
    a("s_mov_b64 exec, -1")
    srd(a, 8, 4, S * D * 2)
    srd(a, 20, 16, S * D * 2)
    srd(a, 24, 18, 896)
    a(f"""v_lshlrev_b32 v240, 5, v2
    v_lshl_add_u32 v240, v3, 3, v240      ; (16n+4G)*2
    v_add_u32 v241, 512, v240
    v_cmp_gt_u32 vcc, 12, v2
    v_mov_b32 v243, 0x20000000
    v_cndmask_b32 v241, v243, v241, vcc
    v_lshlrev_b32 v238, 1, v240
    v_lshlrev_b32 v239, 1, v241
    v_mul_u32_u24 v243, 112, v3
    s_lshl_b32 s40, s28, 4
    s_add_u32 s40, s40, {WS_MOD + 448*4}
    """)
    nl = 0
    for tau in range(4):
        a(f"buffer_load_dwordx4 v[{CA1+4*tau}:{CA1+4*tau+3}], v243, s[12:15], s40 offen offset:{tau*448}"); nl += 1
    a(f"""s_mul_i32 s41, s36, 896
    s_mul_i32 s42, s37, 896""")
    for sec, reg in ((2, GA), (3, SB), (4, CB1), (5, GB)):
        a(f"""s_mov_b32 s43, {WS_MOD + sec*1792}
        buffer_load_dwordx4 v[{reg}:{reg+3}], v238, s[12:15], s43 offen
        buffer_load_dwordx4 v[{reg+4}:{reg+7}], v239, s[12:15], s43 offen"""); nl += 2
    a(f"""buffer_load_dwordx2 v[{WR}:{WR+1}], v240, s[24:27], 0 offen
    buffer_load_dwordx2 v[{WR+2}:{WR+3}], v241, s[24:27], 0 offen
    buffer_load_dwordx2 v[{XR}:{XR+1}], v240, s[8:11], s41 offen
    buffer_load_dwordx2 v[{XR+2}:{XR+3}], v241, s[8:11], s41 offen
    buffer_load_dwordx2 v[{XR+4}:{XR+5}], v240, s[8:11], s42 offen
    buffer_load_dwordx2 v[{XR+6}:{XR+7}], v241, s[8:11], s42 offen"""); nl += 6
    a(f"""s_cmp_lg_u32 s2, 0
    s_cbranch_scc1 kB_nosa
    s_sub_u32 s43, s40, {448*4}""")
    for tau in range(4):
        a(f"buffer_load_dwordx4 v[{SA+4*tau}:{SA+4*tau+3}], v243, s[12:15], s43 offen offset:{tau*448}")
    a("s_waitcnt vmcnt(4)")
    a.label("kB_nosa")
    a(f"""s_bfe_u32 s44, s28, 0x10001
    s_lshl_b32 s44, s44, 4
    v_add_u32 v244, s44, v2          ; e2' = 16nu+n
    v_sub_u32 v245, 27, v244
    s_cmp_ge_u32 s28, 4
    s_cselect_b64 s[46:47], -1, 0
    v_cndmask_b32 v245, v244, v245, s[46:47]
    v_cvt_f32_i32 v245, v245
    v_mul_f32 v245, {f32(1/28)}, v245
    s_and_b32 s45, s28, 1
    s_lshl_b32 s45, s45, 4
    v_lshl_add_u32 v246, v3, 2, s45  ; d2 base
    v_cmp_gt_u32 s[48:49], 28, v246
    v_cmp_gt_u32 vcc, 28, v244
    s_and_b64 s[48:49], s[48:49], vcc
    v_cvt_f32_u32 v246, v246
    v_mul_f32 v246, v246, v245       ; angle j=0
    """)
    for j in range(4):
        if j: a("v_add_f32 v246, v246, v245")
        a(f"""v_cos_f32 v247, v246
        v_sin_f32 v248, v246
        v_cvt_pk_bf16_f32 v{250+j}, v247, v248
        v_cndmask_b32 v{250+j}, 0, v{250+j}, s[48:49]""")
    a(f"""s_lshl_b32 s45, s28, 10
    v_add_u32 v249, s45, v242
    ds_write_b128 v249, v[250:253] offset:{L_COEF}
    s_cmp_eq_u32 s28, 7
    s_cbranch_scc1 kB_w7coef""")
    a(f"""v_lshrrev_b32 v244, 3, v2
    v_lshlrev_b32 v244, 1, v244
    s_lshl_b32 s45, s28, 2
    v_add_u32 v244, s45, v244        ; d2 (r0=0)
    v_cvt_f32_u32 v244, v244
    v_mul_f32 v244, {f32(1/448)}, v244
    v_add_f32 v245, {f32(1/448)}, v244   ; d2(r0=1)/448
    v_lshlrev_b32 v246, 1, v3
    v_cvt_f32_u32 v246, v246         ; 2G
    """)
    for mu in range(2):
        for p in range(2):
            a(f"v_add_f32 v247, {f32(8*mu+p)}, v246" if (mu or p) else "v_mov_b32 v247, v246")
            for r0 in range(2):
                k = 4*r0 + 2*mu + p
                a(f"""v_mul_f32 v248, v247, v{244+r0}
                v_cos_f32 v{TWC+k}, v248
                v_sin_f32 v{TWS+k}, v248""")
    for r0 in range(2):
        a(f"""v_mul_f32 v248, {f32(16.0)}, v{244+r0}
        v_cos_f32 v{TWC+8+r0}, v248
        v_sin_f32 v{TWS+8+r0}, v248""")
    a("s_branch kB_coefdone")
    a.label("kB_w7coef")
    a(f"""v_and_b32 v244, 7, v2
    v_mul_u32_u24 v244, s31, v244
    v_add_u32 v244, s30, v244        ; t_i
    v_cvt_f32_u32 v244, v244
    v_mul_f32 v244, {f32(1/2048)}, v244
    v_lshrrev_b32 v245, 3, v2
    v_cvt_f32_u32 v245, v245
    v_mul_f32 v245, {f32(0.25)}, v245    ; ro/4
    v_lshlrev_b32 v246, 1, v3
    v_cvt_f32_u32 v246, v246
    v_fma_f32 v245, v246, v244, v245
    """)
    for ks in range(2):
        for dd in range(4):
            s2o = 16*ks + 8*(dd >> 1) + (dd & 1)
            a(f"""v_fmamk_f32 v246, v244, {f32(s2o)}, v245
            v_cos_f32 v247, v246
            v_sin_f32 v248, v246
            v_mul_f32 v249, s34, v247
            v_fmac_f32 v249, s33, v248
            v_mul_f32 v247, s32, v247
            v_cvt_pk_bf16_f32 v{250+dd}, v247, v249""")
        a(f"ds_write_b128 v242, v[250:253] offset:{L_COEF + (8+ks)*1024}")
    a(f"""v_and_b32 v245, 1, v2
    v_cvt_f32_u32 v245, v245
    v_mul_f32 v245, {f32(0.25)}, v245    ; ri/4
    v_cvt_f32_u32 v246, v3           ; G
    """)
    for mu in range(2):
        a(f"""v_lshrrev_b32 v244, 1, v2
        v_add_u32 v244, {8*mu}, v244
        v_cvt_f32_u32 v244, v244
        v_mul_f32 v244, {f32(1/16)}, v244    ; e1/16
        v_fma_f32 v247, v246, v244, v245
        """)
        for tp in range(2):
            a(f"""v_fmamk_f32 v248, v244, {f32(8*tp)}, v247
            v_fmamk_f32 v249, v244, {f32(8*tp+4)}, v247
            v_cos_f32 v254, v248
            v_cos_f32 v255, v249
            v_sin_f32 v248, v248
            v_sin_f32 v249, v249
            v_cvt_pk_bf16_f32 v{AOP+tp}, v254, v255
            v_cvt_pk_bf16_f32 v{AOP+2+tp}, v248, v249""")
        a(f"ds_write_b128 v242, v[{AOP}:{AOP+3}] offset:{L_COEF + (10+mu)*1024}")
    a.label("kB_coefdone")
    a(f"""v_bfe_u32 v244, v0, 2, 2         ; rho
    v_lshl_add_u32 v244, v3, 2, v244
    v_mul_u32_u24 v4, 928, v244
    v_and_b32 v244, 3, v0
    v_mul_u32_u24 v244, 56, v244
    s_lshl_b32 s45, s28, 3
    s_add_u32 s45, s45, {L_TILE}
    v_add3_u32 v4, v4, v244, s45
    v_and_b32 v244, 7, v2
    v_mul_u32_u24 v5, {684*4}, v244
    v_mul_u32_u24 v244, 320, v3
    v_lshrrev_b32 v245, 3, v2
    v_lshl_add_u32 v244, v245, 3, v244
    s_lshl_b32 s45, s28, 4
    s_add_u32 s45, s45, {L_XB}
    v_add3_u32 v5, v5, v244, s45
    s_mul_i32 s45, s28, {684*4}
    s_add_u32 s45, s45, {L_XB}
    v_mul_u32_u24 v244, 160, v2
    v_lshlrev_b32 v245, 4, v3
    v_add_u32 v246, 64, v245
    v_min_u32 v246, 96, v246
    v_add3_u32 v6, v244, v245, s45
    v_add3_u32 v7, v244, v246, s45
    v_sub_u32 v244, 2560, v244
    v_add3_u32 v236, v244, v245, s45
    v_add3_u32 v237, v244, v246, s45
    """)
    a("s_waitcnt vmcnt(4)")
    for k in range(8):
        w = WR + k // 2
        a(f"v_lshlrev_b32 v244, 16, v{w}" if k % 2 == 0 else f"v_and_b32 v244, 0xffff0000, v{w}")
        a(f"""v_mul_f32 v{Q+k}, v{CB1+k}, v244
        v_mul_f32 v{P0+k}, v{GB+k}, v{SB+k}
        v_mul_f32 v{P1+k}, v{GB+k}, v{CB1+k}""")
        if k == 0:
            a(f"""v_mul_f32 v246, v{SB+k}, v244
            v_mov_b32 v245, v{Q+k}""")
        else:
            a(f"""v_fmac_f32 v246, v{SB+k}, v244
            v_add_f32 v245, v245, v{Q+k}""")
    for sh in (8, 4, 2, 1):
        a(f"""v_add_f32_dpp v245, v245, v245 row_ror:{sh} row_mask:0xf bank_mask:0xf
        v_add_f32_dpp v246, v246, v246 row_ror:{sh} row_mask:0xf bank_mask:0xf""")
    a("""v_add_f32_dpp v245, v245, v245 row_bcast:15 row_mask:0xa bank_mask:0xf
    v_add_f32_dpp v246, v246, v246 row_bcast:15 row_mask:0xa bank_mask:0xf
    v_add_f32_dpp v245, v245, v245 row_bcast:31 row_mask:0xc bank_mask:0xf
    v_add_f32_dpp v246, v246, v246 row_bcast:31 row_mask:0xc bank_mask:0xf
    v_readlane_b32 s50, v245, 63
    v_readlane_b32 s51, v246, 63
    s_waitcnt lgkmcnt(0)
    s_barrier
    s_cmp_eq_u32 s28, 7
    s_cbranch_scc1 kB_w7skip""")
    def trread(tau):
        for ks in range(2):
            for h in range(2):
                r = AOP + 8*tau + 4*ks + 2*h
                a(f"ds_read_b64_tr_b16 v[{r}:{r+1}], v4 offset:{ks*29696 + h*14848 + 224*tau}")
    def t2(tau):
        for ks in range(2):
            r = AOP + 8*tau + 4*ks
            c = "0" if ks == 0 else f"v[{ACC+4*tau}:{ACC+4*tau+3}]"
            a(f"v_mfma_f32_16x16x32_bf16 v[{ACC+4*tau}:{ACC+4*tau+3}], v[{r}:{r+3}], v[{T2B+4*ks}:{T2B+4*ks+3}], {c}")
    for ks in range(2):
        a(f"ds_read_b128 v[{T2B+4*ks}:{T2B+4*ks+3}], v242 offset:{L_COEF+(8+ks)*1024}")
    trread(0); trread(1); trread(2)
    a("s_waitcnt lgkmcnt(8)"); t2(0); trread(3)
    a("s_waitcnt lgkmcnt(8)"); t2(1)
    for mu in range(2):
        a(f"ds_read_b128 v[{H1A+4*mu}:{H1A+4*mu+3}], v242 offset:{L_COEF+(10+mu)*1024}")
    a("s_waitcnt lgkmcnt(6)"); t2(2)
    a("s_waitcnt lgkmcnt(2)"); t2(3)
    for q in range(8):
        a(f"ds_read_b128 v[{H2B+4*q}:{H2B+4*q+3}], v242 offset:{L_COEF+q*1024}")
    for tau in range(4):
        for r in range(4):
            a(f"v_mul_f32 v{ACC+4*tau+r}, v{ACC+4*tau+r}, v{CA1+4*tau+r}")
    a(f"""s_cmp_lg_u32 s2, 0
    s_cbranch_scc1 kB_nosa2
    v_cmp_eq_u32 vcc, 0, v2
    v_mov_b32 v244, {f32(2048.0)}
    v_cndmask_b32 v244, 0, v244, vcc
    s_waitcnt vmcnt(0)""")
    for k in range(16):
        a(f"v_fmac_f32 v{ACC+k}, v{SA+k}, v244")
    a.label("kB_nosa2")
    for r0 in range(2):
        for k in range(2):
            a(f"""v_cvt_pk_bf16_f32 v{BOP+4*r0+k}, v{ACC+8*k+r0}, v{ACC+8*k+4+r0}
            v_cvt_pk_bf16_f32 v{BOP+4*r0+2+k}, v{ACC+8*k+r0+2}, v{ACC+8*k+4+r0+2}
            v_cvt_pk_bf16_f32 v{TMP+2*r0+k}, v{ACC+8*k+r0+2}, v{ACC+8*k+4+r0+2}""")
    for r0 in range(2):
        for k in range(2):
            a(f"v_mov_b32_dpp v{BOP+4*r0+2+k}, v{BOP+4*r0+k} row_ror:8 row_mask:0xf bank_mask:0x3")
    for r0 in range(2):
        for k in range(2):
            a(f"v_mov_b32_dpp v{BOP+4*r0+k}, v{TMP+2*r0+k} row_ror:8 row_mask:0xf bank_mask:0xc")
    a("s_waitcnt lgkmcnt(8)")
    A1 = AOP
    for r0 in range(2):
        for mu in range(2):
            d = A1 + 8*r0 + 4*mu
            a(f"v_mfma_f32_16x16x32_bf16 v[{d}:{d+3}], v[{H1A+4*mu}:{H1A+4*mu+3}], v[{BOP+4*r0}:{BOP+4*r0+3}], 0")
    GP = AOP + 16
    def tw(re, im, k, dst):
        a(f"""v_mul_f32 v244, v{re}, v{TWC+k}
        v_mul_f32 v245, v{im}, v{TWC+k}
        v_fmac_f32 v244, v{im}, v{TWS+k}
        v_fma_f32 v245, -v{re}, v{TWS+k}, v245
        v_cvt_pk_bf16_f32 v{dst}, v244, v245""")
    for r0 in range(2):
        tw(A1 + 8*r0, A1 + 8*r0 + 1, 8 + r0, GP + 8 + r0)
    for mu in range(2):
        for p in range(2):
            for r0 in range(2):
                d = A1 + 8*r0 + 4*mu + 2*p
                tw(d, d+1, 4*r0 + 2*mu + p, GP + 2*(2*mu+p) + r0)
            q = GP + 2*(2*mu+p)
            a(f"ds_write_b64 v5, v[{q}:{q+1}] offset:{(8*mu+p)*160}")
    a(f"""s_mov_b64 exec, 0xffff
    ds_write_b64 v5, v[{GP+8}:{GP+9}] offset:2560
    s_mov_b64 exec, -1
    s_branch kB_h2""")
    a.label("kB_w7skip")
    for q in range(8):
        a(f"ds_read_b128 v[{H2B+4*q}:{H2B+4*q+3}], v242 offset:{L_COEF+q*1024}")
    a.label("kB_h2")
    a("""s_waitcnt lgkmcnt(0)
    s_barrier""")
    A2 = ACC
    for pr, ks, ad in ((0, 0, 6), (0, 1, 7), (1, 0, 236), (1, 1, 237)):
        r = A2 + 8*pr + 4*ks
        a(f"ds_read_b128 v[{r}:{r+3}], v{ad}")
    Y = AOP
    for pr in range(2):
        for ks in range(2):
            a(f"s_waitcnt lgkmcnt({3 - 2*pr - ks})")
            for nu in range(2):
                d = Y + 8*pr + 4*nu
                c = "0" if ks == 0 else f"v[{d}:{d+3}]"
                b = H2B + 4*(4*pr + 2*nu + ks)
                r = A2 + 8*pr + 4*ks
                a(f"v_mfma_f32_16x16x32_bf16 v[{d}:{d+3}], v[{r}:{r+3}], v[{b}:{b+3}], {c}")
    XU = AOP + 16
    a("s_waitcnt vmcnt(0)")
    for row in range(2):
        for j in range(4):
            a(f"""v_lshlrev_b32 v{XU+8*row+2*j}, 16, v{XR+4*row+j}
            v_and_b32 v{XU+8*row+2*j+1}, 0xffff0000, v{XR+4*row+j}""")
    for row in range(2):
        for k in range(8):
            a(f"v_fma_f32 v{Y+8*row+k}, v{GA+k}, v{Y+8*row+k}, v{XU+8*row+k}")
    SS = 244
    for k in range(8):
        for row in range(2):
            y = Y + 8*row + k
            if k == 0:
                a(f"""v_mul_f32 v{SS+2+row}, v{y}, v{y}
                v_mul_f32 v{SS+4+row}, v{y}, v{Q+k}""")
            else:
                if k == 1: a(f"v_add_f32 v{SS+row}, v{y-1}, v{y}")
                else: a(f"v_add_f32 v{SS+row}, v{SS+row}, v{y}")
                a(f"""v_fmac_f32 v{SS+2+row}, v{y}, v{y}
                v_fmac_f32 v{SS+4+row}, v{y}, v{Q+k}""")
    for j in range(3):
        a(f"v_permlane32_swap_b32 v{SS+2*j}, v{SS+2*j+1}")
    for j in range(3):
        a(f"v_add_f32 v{SS+2*j}, v{SS+2*j}, v{SS+2*j+1}")
    fill = [f"v_add_f32 v{XU+8*row+k}, v{Y+8*row+k}, v{P0+k}" for row in range(2) for k in range(8)]
    for sh in (8, 4, 2, 1):
        for j in range(3):
            a(f"v_add_f32_dpp v{SS+2*j}, v{SS+2*j}, v{SS+2*j} row_ror:{sh} row_mask:0xf bank_mask:0xf")
        for _ in range(2): a(fill.pop())
    for j in range(3):
        a(f"v_add_f32_dpp v{SS+2*j}, v{SS+2*j}, v{SS+2*j} row_bcast:15 row_mask:0xa bank_mask:0xf")
    a(f"""v_mul_f32 v244, {f32(1/448)}, v244
    v_mul_f32 v246, {f32(1/448)}, v246
    v_fma_f32 v246, -v244, v244, v246
    v_max_f32 v246, 0, v246
    v_cvt_pk_bf16_f32 v245, v244, v246
    v_lshlrev_b32 v244, 16, v245
    v_and_b32 v246, 0xffff0000, v245
    v_add_f32 v246, {f32(1e-5)}, v246""")
    round_bf16(a, 246)
    a("v_sqrt_f32 v246, v246")
    a(fill.pop())
    round_bf16(a, 246)
    a("v_rcp_f32 v246, v246")
    a(f"""v_fma_f32 v248, -v244, s50, v248
    v_mul_f32 v245, -v244, v246            ; b = -m*rstd
    v_fma_f32 v248, v248, v246, s51        ; r
    v_mov_b32 v250, s36
    v_mov_b32 v251, s37
    v_ashrrev_i32 v249, 31, v248
    v_or_b32 v249, 0x80000000, v249
    v_xor_b32 v248, v248, v249
    v_and_b32 v248, 0xfffff800, v248
    v_min_u32 v248, 0xfffff000, v248
    v_readlane_b32 s52, v246, 16
    v_readlane_b32 s53, v245, 16
    v_readlane_b32 s54, v246, 48
    v_readlane_b32 s55, v245, 48
    v_readlane_b32 s56, v248, 16
    v_readlane_b32 s57, v248, 48
    s_or_b32 s56, s56, s36
    s_or_b32 s57, s57, s37
    s_cmp_eq_u32 s36, s37
    s_cselect_b32 s57, 0, s57
    s_max_u32 s56, s56, s57
    v_mov_b32 v250, s56
    s_lshl_b32 s58, s28, 2
    v_mov_b32 v251, s58
    ds_write_b32 v251, v250 offset:{L_KEY}
    """)
    while fill: a(fill.pop())
    v_b = (252, 253)
    a(f"""v_mov_b32 v252, s53
    v_mov_b32 v253, s55""")
    N2 = ACC
    OUTP = BOP
    for row in range(2):
        for k in range(8):
            a(f"v_fma_f32 v{N2+8*row+k}, v{Y+8*row+k}, s{52+2*row}, v{v_b[row]}")
    a("""s_waitcnt lgkmcnt(0)
    s_barrier
    v_mov_b32 v251, 0""")
    a(f"""ds_read_b128 v[244:247], v251 offset:{L_KEY}
    ds_read_b128 v[248:251], v251 offset:{L_KEY+16}""")
    for row in range(2):
        for k in range(8):
            a(f"v_fmac_f32 v{XU+8*row+k}, v{N2+8*row+k}, v{P1+k}")
        for j in range(4):
            a(f"v_cvt_pk_bf16_f32 v{OUTP+4*row+j}, v{XU+8*row+2*j}, v{XU+8*row+2*j+1}")
    a(f"""s_waitcnt lgkmcnt(0)
    v_max3_u32 v244, v244, v245, v246
    v_max3_u32 v248, v248, v249, v250
    v_max3_u32 v244, v244, v247, v251
    v_max_u32 v244, v244, v248
    v_readfirstlane_b32 s59, v244
    s_and_b32 s60, s59, 0x7ff
    s_mul_i32 s61, s2, 1792
    s_add_u32 s61, s61, {WS_CAND}
    s_lshl_b32 s62, s2, 2
    s_add_u32 s62, s62, {WS_KEY}
    """)
    for row in range(2):
        rs = 36 + row
        if row == 1:
            a(f"""s_cmp_eq_u32 s36, s37
            s_cbranch_scc1 kB_end""")
        a(f"""s_cmp_eq_u32 s{rs}, s60
        s_cbranch_scc1 kB_pub{row}
        buffer_store_dwordx2 v[{OUTP+4*row}:{OUTP+4*row+1}], v240, s[20:23], s{41+row} offen
        buffer_store_dwordx2 v[{OUTP+4*row+2}:{OUTP+4*row+3}], v241, s[20:23], s{41+row} offen
        """)
        if row == 0: a("s_branch kB_row1")
        else: a("s_endpgm")
        a.label(f"kB_pub{row}")
        a(f"""v_mov_b32 v245, 0
        s_mov_b64 exec, 1
        buffer_store_dword v244, v245, s[12:15], s62 offen sc1
        s_mov_b64 exec, -1""")
        for k in range(8):
            a(f"v_fma_f32 v{Y+k}, v{N2+8*row+k}, v{CB1+k}, v{SB+k}")
        for j in range(4):
            a(f"""v_cvt_pk_bf16_f32 v{246+j}, v{Y+2*j}, v{Y+2*j+1}
            v_min_u32 v{246+j}, -2, v{246+j}
            v_min_u32 v{OUTP+4*row+j}, -2, v{OUTP+4*row+j}""")
        a(f"""buffer_store_dwordx2 v[246:247], v240, s[12:15], s61 offen sc1
        buffer_store_dwordx2 v[248:249], v241, s[12:15], s61 offen sc1
        buffer_store_dwordx2 v[{OUTP+4*row}:{OUTP+4*row+1}], v240, s[12:15], s61 offen offset:896 sc1
        buffer_store_dwordx2 v[{OUTP+4*row+2}:{OUTP+4*row+3}], v241, s[12:15], s61 offen offset:896 sc1""")
        if row == 0: a.label("kB_row1")
        else: a("s_endpgm")
    a.label("kB_mlp")
    a(f"""s_load_dwordx2 s[4:5], s[0:1], {KA_WG}
    s_load_dwordx2 s[6:7], s[0:1], {KA_WU}
    s_load_dwordx2 s[16:17], s[0:1], {KA_WD}
    s_load_dwordx2 s[18:19], s[0:1], {KA_WS}
    s_load_dwordx2 s[30:31], s[0:1], {KA_OUT}
    v_readfirstlane_b32 s28, v0
    v_and_b32 v1, 63, v0
    v_and_b32 v2, 15, v0
    v_bfe_u32 v3, v0, 4, 2
    v_lshlrev_b32 v4, 4, v1          ; lane*16
    s_lshr_b32 s28, s28, 6           ; wave
    s_sub_u32 s29, s2, {NCAND}         ; j
    v_lshrrev_b32 v5, 2, v1
    v_mul_u32_u24 v5, 3584, v5
    v_and_b32 v6, 3, v1
    v_lshl_add_u32 v5, v6, 4, v5
    s_and_b32 s32, s28, 3
    s_mul_i32 s33, s32, {7*16*3584}
    s_lshl_b32 s34, s29, 6
    s_add_u32 s33, s33, s34
    s_mul_i32 s34, s28, {7*1024}
    s_add_u32 s34, s34, {M_GATE}
    s_cmp_ge_u32 s28, 4
    s_waitcnt lgkmcnt(0)
    s_cselect_b32 s4, s6, s4
    s_cselect_b32 s5, s7, s5""")
    srd(a, 8, 4, 448 * 1792 * 2)
    srd(a, 20, 16, 1792 * 448 * 2)
    srd(a, 12, 18, WS_SIZE_USED)
    srd(a, 24, 30, S * D * 2)
    for jj in range(7):
        a(f"""s_mov_b32 m0, s34
        s_add_u32 s34, s34, 1024
        buffer_load_dwordx4 v5, s[8:11], s33 offen lds
        s_add_u32 s33, s33, {16*3584}""")
    a(f"""s_mul_i32 s33, s29, 28672
    s_lshl_b32 s34, s28, 10
    s_add_u32 s33, s33, s34
    s_add_u32 s34, s34, {M_DOWN}""")
    for jj in range(4):
        if jj == 3:
            a("""s_cmp_ge_u32 s28, 4
            s_cbranch_scc1 kB_mlp_dmadone""")
        a(f"""s_mov_b32 m0, s34
        s_add_u32 s34, s34, 8192
        buffer_load_dwordx4 v4, s[20:23], s33 offen lds
        s_add_u32 s33, s33, 8192""")
    a.label("kB_mlp_dmadone")
    a(f"""v_lshlrev_b32 v7, 3, v3
    s_lshl_b32 s35, s29, 5
    s_add_u32 s35, s35, {WS_MOD + 5*1792}
    buffer_load_dwordx2 v[8:9], v7, s[12:15], s35 offen
    v_mov_b32 v10, -1
    v_lshlrev_b32 v11, 2, v0
    s_waitcnt vmcnt(0)
    s_barrier
    s_cmp_ge_u32 s28, 4
    s_cbranch_scc1 kB_end""")
    WGU, WDN = 16, 72
    a(f"""v_bfe_u32 v12, v0, 2, 2
    v_lshl_add_u32 v12, v3, 3, v12   ; 8G+rho
    v_lshlrev_b32 v13, 6, v12
    v_bfe_u32 v14, v0, 1, 1
    v_mul_u32_u24 v14, {M_UP}, v14
    v_and_b32 v15, 1, v0
    v_lshl_add_u32 v14, v15, 3, v14
    s_lshl_b32 s36, s28, 4
    s_add_u32 s36, s36, {M_GATE}
    v_add3_u32 v13, v13, v14, s36
    v_mul_u32_u24 v12, 896, v12
    v_and_b32 v14, 3, v0
    v_lshl_add_u32 v12, v14, 3, v12
    s_mul_i32 s36, s28, 224
    s_add_u32 s36, s36, {M_DOWN}
    v_add_u32 v12, s36, v12""")
    cnt = 0
    for ks in range(14):
        for h in range(2):
            r = WGU + 4*ks + 2*h
            a(f"ds_read_b64_tr_b16 v[{r}:{r+1}], v13 offset:{ks*2048 + h*256}")
        if ks % 4 == 3: a("s_waitcnt lgkmcnt(0)")
    a("s_waitcnt lgkmcnt(0)")
    for T in range(7):
        for h in range(2):
            r = WDN + 4*T + 2*h
            a(f"ds_read_b64_tr_b16 v[{r}:{r+1}], v12 offset:{T*32 + h*3584}")
    a(f"""s_mul_i32 s36, s28, 896
    s_add_u32 s36, s36, {M_H}
    v_add_u32 v100, s36, v4
    v_lshlrev_b32 v101, 4, v3
    v_add_u32 v101, s36, v101
    v_and_b32 v102, 1, v3
    v_lshlrev_b32 v102, 3, v102
    v_lshrrev_b32 v103, 1, v3
    v_lshl_add_u32 v102, v103, 2, v102
    s_lshl_b32 s36, s28, 4
    v_add_u32 v102, s36, v102
    v_lshlrev_b32 v103, 4, v3
    v_lshrrev_b32 v104, 1, v3
    v_mul_u32_u24 v104, 1792, v104
    v_and_b32 v105, 1, v3
    v_lshl_add_u32 v104, v105, 4, v104
    s_mul_i32 s37, s28, {14*1792}
    s_lshl_b32 s36, s29, 5
    s_add_u32 s37, s37, s36
    s_add_u32 s37, s37, {WS_PART}
    s_mov_b32 s38, {WS_KEY}
    s_mov_b32 s39, {SPIN}
    v_cmp_eq_u32 s[40:41], 32, v1
    s_waitcnt lgkmcnt(0)
    s_mov_b32 exec_lo, 0xffffffff
    s_mov_b32 exec_hi, 0x1""")
    a.label("kB_pollkey")
    a(f"""buffer_load_dwordx4 v[108:111], v4, s[12:15], s38 offen sc1
    s_sub_u32 s39, s39, 1
    s_cbranch_scc1 kB_keydone
    s_waitcnt vmcnt(0)
    v_cndmask_b32 v109, v109, 0, s[40:41]
    v_cndmask_b32 v110, v110, 0, s[40:41]
    v_cndmask_b32 v111, v111, 0, s[40:41]
    v_max3_u32 v112, v108, v109, v110
    v_max_u32 v112, v112, v111
    v_cmp_eq_u32 vcc, -1, v112
    s_cbranch_vccz kB_keydone
    s_sleep 1
    s_branch kB_pollkey""")
    a.label("kB_keydone")
    a("""s_waitcnt vmcnt(0)
    s_mov_b64 exec, -1
    v_cmp_lt_u32 vcc, 32, v1
    v_cndmask_b32 v112, v112, 0, vcc
    v_mov_b32 v113, v112""")
    for sh in (8, 4, 2, 1):
        a(f"v_max_u32_dpp v113, v113, v113 row_ror:{sh} row_mask:0xf bank_mask:0xf")
    a(f"""v_readlane_b32 s42, v113, 0
    v_readlane_b32 s43, v113, 16
    v_readlane_b32 s44, v113, 32
    s_max_u32 s42, s42, s43
    s_max_u32 s42, s42, s44
    v_cmp_eq_u32 vcc, s42, v112
    s_ff1_i32_b64 s43, vcc           ; lane
    v_cmp_eq_u32 vcc, s42, v109
    v_cndmask_b32 v113, 0, 1, vcc
    v_cmp_eq_u32 vcc, s42, v110
    v_cndmask_b32 v113, v113, 2, vcc
    v_cmp_eq_u32 vcc, s42, v111
    v_cndmask_b32 v113, v113, 3, vcc
    s_and_b32 s43, s43, 63
    v_readlane_b32 s44, v113, s43
    s_lshl_b32 s43, s43, 2
    s_add_u32 s43, s43, s44          ; slot
    s_min_u32 s43, s43, {NCAND-1}
    s_mul_i32 s43, s43, 1792
    s_add_u32 s43, s43, {WS_CAND}
    s_and_b32 s45, s42, 0x7ff
    s_lshl_b32 s46, s29, 4
    s_add_u32 s46, s46, s43
    v_lshlrev_b32 v106, 2, v3
    s_mov_b32 s39, {SPIN}
    s_mov_b32 exec_lo, 0xffffffff
    s_mov_b32 exec_hi, 0xffffff""")
    a.label("kB_pollh")
    a(f"""buffer_load_dwordx4 v[108:111], v4, s[12:15], s43 offen sc1
    buffer_load_dword v107, v106, s[12:15], s46 offen offset:896 sc1
    s_sub_u32 s39, s39, 1
    s_cbranch_scc1 kB_hdone
    s_waitcnt vmcnt(0)
    v_max3_u32 v112, v108, v109, v110
    v_max3_u32 v112, v112, v111, v107
    v_cmp_eq_u32 vcc, -1, v112
    s_cbranch_vccnz kB_pollh""")
    a.label("kB_hdone")
    a("""s_waitcnt vmcnt(0)
    ds_write_b128 v100, v[108:111]
    s_mov_b64 exec, -1
    s_waitcnt lgkmcnt(0)""")
    HB = 116
    for ks in range(14):
        a(f"ds_read_b128 v[{HB+4*ks}:{HB+4*ks+3}], v101 offset:{64*ks}")
    a(f"""s_and_b32 s47, s42, 0xfffff800
    s_ashr_i32 s48, s47, 31
    s_not_b32 s48, s48
    s_or_b32 s48, s48, 0x80000000
    s_xor_b32 s47, s47, s48
    v_mov_b32 v114, s47""")
    round_bf16(a, 114)
    a(f"""v_mul_f32 v114, {f32(-math.log2(math.e))}, v114
    v_exp_f32 v114, v114
    v_add_f32 v114, 1.0, v114
    v_rcp_f32 v114, v114""")
    round_bf16(a, 114)
    for ks in range(14):
        a(f"s_waitcnt lgkmcnt({13-ks})")
        c = "0" if ks == 0 else "v[108:111]"
        a(f"v_mfma_f32_16x16x32_bf16 v[108:111], v[{WGU+4*ks}:{WGU+4*ks+3}], v[{HB+4*ks}:{HB+4*ks+3}], {c}")
    a(f"""v_permlane32_swap_b32 v108, v110
    v_permlane32_swap_b32 v109, v111
    v_cvt_pk_bf16_f32 v108, v108, v109     ; g pair
    v_cvt_pk_bf16_f32 v110, v110, v111     ; u pair
    v_and_b32 v109, 0xffff0000, v108
    v_lshlrev_b32 v108, 16, v108
    v_and_b32 v111, 0xffff0000, v110
    v_lshlrev_b32 v110, 16, v110
    v_mul_f32 v112, {f32(-math.log2(math.e))}, v108
    v_mul_f32 v113, {f32(-math.log2(math.e))}, v109
    v_exp_f32 v112, v112
    v_exp_f32 v113, v113
    v_add_f32 v112, 1.0, v112
    v_add_f32 v113, 1.0, v113
    v_rcp_f32 v112, v112
    v_rcp_f32 v113, v113
    v_mul_f32 v108, v108, v112
    v_mul_f32 v109, v109, v113
    v_cvt_pk_bf16_f32 v108, v108, v109
    v_and_b32 v109, 0xffff0000, v108
    v_lshlrev_b32 v108, 16, v108
    v_mul_f32 v108, v108, v110
    v_mul_f32 v109, v109, v111
    v_cvt_pk_bf16_f32 v108, v108, v109
    ds_write_b32 v102, v108 offset:{M_GU}
    s_waitcnt lgkmcnt(0)
    s_barrier
    ds_read_b128 v[108:111], v103 offset:{M_GU}
    s_waitcnt lgkmcnt(0)""")
    for T in range(7):
        a(f"v_mfma_f32_16x16x32_bf16 v[{HB+4*T}:{HB+4*T+3}], v[{WDN+4*T}:{WDN+4*T+3}], v[108:111], 0")
    a("s_mov_b32 exec_lo, 0x10001\n s_mov_b32 exec_hi, 0x10001")
    for T in range(7):
        a(f"""buffer_store_dwordx4 v[{HB+4*T}:{HB+4*T+3}], v104, s[12:15], s37 offen sc1
        s_add_u32 s37, s37, 3584""")
    a(f"""s_mov_b32 exec_lo, 0xffffffff
    s_mov_b32 exec_hi, 0xffffff
    s_mov_b32 s39, {SPIN}
    s_cmp_lg_u32 s28, 0
    s_cbranch_scc1 kB_copyout
    s_mul_i32 s37, s29, 1792
    s_add_u32 s37, s37, {WS_PART}
    v_lshlrev_b32 v105, 5, v1""")
    a.label("kB_pollp")
    a(f"""buffer_load_dwordx4 v[116:119], v105, s[12:15], s37 offen sc1
    buffer_load_dwordx4 v[120:123], v105, s[12:15], s37 offen offset:16 sc1
    s_sub_u32 s39, s39, 1
    s_cbranch_scc1 kB_pdone
    s_waitcnt vmcnt(0)
    v_max3_u32 v112, v116, v117, v118
    v_max3_u32 v112, v112, v119, v120
    v_max3_u32 v112, v112, v121, v122
    v_max_u32 v112, v112, v123
    v_cmp_eq_u32 vcc, -1, v112
    s_cbranch_vccnz kB_pollp""")
    a.label("kB_pdone")
    a("""s_waitcnt vmcnt(0)
    s_mov_b32 exec_lo, 0x0
    s_mov_b32 exec_hi, 0xff000000""")
    for i in range(8): a(f"v_mov_b32 v{116+i}, 0")
    a("s_mov_b64 exec, -1")
    for i in range(4): a(f"v_permlane32_swap_b32 v{116+i}, v{120+i}")
    for i in range(4): a(f"v_add_f32 v{116+i}, v{116+i}, v{120+i}")
    for i in range(2): a(f"v_permlane16_swap_b32 v{116+i}, v{118+i}")
    for i in range(2): a(f"v_add_f32 v{116+i}, v{116+i}, v{118+i}")
    for sh in (8, 4, 2, 1):
        for i in range(2):
            a(f"v_add_f32_dpp v{116+i}, v{116+i}, v{116+i} row_ror:{sh} row_mask:0xf bank_mask:0xf")
    a(f"""v_cvt_pk_bf16_f32 v116, v116, v117
    v_and_b32 v117, 0xffff0000, v116
    v_lshlrev_b32 v116, 16, v116
    v_mul_f32 v116, v116, v114
    v_mul_f32 v117, v117, v114
    v_cvt_pk_bf16_f32 v116, v116, v117
    v_and_b32 v117, 0xffff0000, v116
    v_lshlrev_b32 v116, 16, v116
    v_lshlrev_b32 v118, 16, v107
    v_and_b32 v119, 0xffff0000, v107
    v_fmac_f32 v118, v116, v8
    v_fmac_f32 v119, v117, v9
    v_cvt_pk_bf16_f32 v118, v118, v119
    s_mul_i32 s37, s45, 896
    s_lshl_b32 s36, s29, 4
    s_add_u32 s37, s37, s36
    s_mov_b32 exec_lo, 0x10001
    s_mov_b32 exec_hi, 0x10001
    buffer_store_dword v118, v106, s[24:27], s37 offen
    s_endpgm""")
    a.label("kB_copyout")
    a(f"""s_sub_u32 s36, s28, 1
    s_mul_i32 s36, s36, {NMLP}
    s_add_u32 s36, s36, s29          ; slot
    s_cmp_ge_u32 s36, {NCAND}
    s_cbranch_scc1 kB_end
    s_lshl_b32 s37, s36, 2
    s_add_u32 s37, s37, {WS_KEY}
    s_mul_i32 s36, s36, 1792
    s_add_u32 s36, s36, {WS_CAND}
    v_mov_b32 v105, 0""")
    a.label("kB_pollc")
    a(f"""buffer_load_dword v112, v105, s[12:15], s37 offen sc1
    buffer_load_dwordx4 v[116:119], v4, s[12:15], s36 offen offset:896 sc1
    s_sub_u32 s39, s39, 1
    s_cbranch_scc1 kB_cdone
    s_waitcnt vmcnt(0)
    v_max3_u32 v113, v116, v117, v118
    v_max3_u32 v113, v113, v119, v112
    v_cmp_eq_u32 vcc, -1, v113
    s_cbranch_vccnz kB_pollc""")
    a.label("kB_cdone")
    a("""s_waitcnt vmcnt(0)
    v_readfirstlane_b32 s36, v112
    s_and_b32 s36, s36, 0x7ff
    s_cmp_eq_u32 s36, s45
    s_cbranch_scc1 kB_end
    s_mul_i32 s36, s36, 896
    buffer_store_dwordx4 v[116:119], v4, s[24:27], s36 offen""")
    a.label("kB_end")
    a("s_endpgm")
    return dict(grid=NCAND + NMLP, block=512, lds=L_END, vgpr=256, sgpr=72)
```

```python
import sys, math, struct
from asmlib import Asm

NAME = "adaLN_cond__spectral_fnet__moe_arch_mod__prompt"
S, D = 2048, 448
KA_X, KA_WR, KA_WG, KA_WU, KA_WD, KA_C, KA_WMOD, KA_OUT, KA_DBG, KA_WS = 0, 48, 56, 64, 72, 80, 88, 96, 104, 112
WS_A = 0
WS_MOD = 0x1C0000
WS_KEY = 0x1C3000
WS_CAND = 0x1C4000
NCAND = 129
WS_PART = WS_CAND + NCAND * 1792
NMLP = 56
WS_END = WS_PART + NMLP * 1792
WS_SIZE_USED = 0x220000
assert WS_END <= WS_KEY + 224 * 1536 <= WS_SIZE_USED

def f32(x):
    return "0x%08x" % struct.unpack("<I", struct.pack("<f", x))[0]

def srd(a, dst, base, nbytes):
    a(f"""s_mov_b32 s{dst}, s{base}
    s_and_b32 s{dst+1}, s{base+1}, 0xffff
    s_mov_b32 s{dst+2}, {nbytes}
    s_mov_b32 s{dst+3}, 0x00020000""")

def round_bf16(a, v, tmp=None):
    a(f"v_cvt_pk_bf16_f32 v{v}, v{v}, v{v}")
    a(f"v_lshlrev_b32 v{v}, 16, v{v}")

def kernel_A(a, opt):
    NMAIN = 224; NMOD = 84
    a.label("kA_kernel")
    a(f"""s_cmp_ge_u32 s2, {NMAIN+NMOD}
    s_cbranch_scc1 kA_end
    s_cmp_ge_u32 s2, {NMAIN}
    s_cbranch_scc1 kA_mod
    s_load_dwordx2 s[4:5], s[0:1], {KA_X}
    s_load_dwordx2 s[6:7], s[0:1], {KA_WS}
    s_lshr_b32 s20, s2, 5            ; q = chunk
    s_and_b32 s21, s2, 31            ; s2idx
    v_lshrrev_b32 v1, 3, v0          ; s1
    v_and_b32 v2, 7, v0              ; u
    s_movk_i32 s22, 28672
    v_mul_lo_u32 v3, v1, s22
    v_lshl_add_u32 v3, v2, 4, v3
    s_mul_i32 s23, s21, 896          ; s2*896
    """)
    for jj in range(7):
        a(f"""s_add_u32 s{24+jj}, s20, {jj}
        s_cmp_ge_u32 s{24+jj}, 7
        s_cselect_b32 s31, 7, 0
        s_sub_u32 s{24+jj}, s{24+jj}, s31
        s_lshl_b32 s{24+jj}, s{24+jj}, 7
        s_add_u32 s{24+jj}, s{24+jj}, s23""")
    a("s_waitcnt lgkmcnt(0)")
    srd(a, 8, 4, S * D * 2)
    srd(a, 12, 6, WS_SIZE_USED)
    XV = 8
    for jj in range(7):
        a(f"buffer_load_dwordx4 v[{XV+4*jj}:{XV+4*jj+3}], v3, s[8:11], s{24+jj} offen")
    a(f"""v_and_b32 v4, 15, v0             ; n
    v_bfe_u32 v5, v0, 4, 2           ; G
    v_bfe_u32 v6, v0, 6, 2           ; nu
    v_lshrrev_b32 v7, 8, v0          ; eta
    v_lshl_add_u32 v45, v6, 4, v4    ; j = 16nu+n
    v_lshrrev_b32 v46, 1, v45        ; g
    v_and_b32 v47, 1, v45            ; ri
    v_cvt_f32_u32 v48, v46
    v_cvt_f32_u32 v49, v47
    v_mul_f32 v48, {f32(1/64)}, v48     ; g/64
    v_mul_f32 v49, 0.25, v49         ; phase
    v_cmp_eq_u32 vcc, 1, v45
    v_cndmask_b32 v48, v48, 0.5, vcc    ; j==1 -> g_eff=32
    v_cndmask_b32 v49, v49, 0, vcc
    v_lshlrev_b32 v50, 2, v5
    v_cvt_f32_u32 v50, v50           ; 4G
    v_fma_f32 v49, v48, v50, v49     ; angle at s1 = 4G
    """.replace("0.25", f32(0.25)))
    CB = 52
    for ks in range(2):
        for h in range(2):
            for rp in range(2):
                s1a = 32*ks + 16*h + 2*rp
                a(f"""v_fmamk_f32 v60, v48, {f32(s1a)}, v49
                v_fmamk_f32 v61, v48, {f32(s1a+1)}, v49
                v_cos_f32 v60, v60
                v_cos_f32 v61, v61
                v_cvt_pk_bf16_f32 v{CB+4*ks+2*h+rp}, v60, v61""")
    a(f"""v_mul_u32_u24 v62, 160, v1
    v_lshrrev_b32 v63, 2, v2
    v_lshl_add_u32 v62, v63, 6, v62
    v_and_b32 v63, 3, v2
    v_lshl_add_u32 v62, v63, 3, v62
    v_bfe_u32 v63, v0, 2, 2          ; rho
    v_lshl_add_u32 v63, v5, 2, v63   ; 4G+rho
    v_mul_u32_u24 v63, 160, v63
    v_and_b32 v64, 3, v0             ; cc
    v_lshl_add_u32 v63, v64, 3, v63
    v_lshl_add_u32 v63, v7, 6, v63
    v_lshl_add_u32 v64, v46, 6, v47
    v_mul_u32_u24 v64, 896, v64
    v_lshl_add_u32 v64, v7, 6, v64
    v_lshl_add_u32 v64, v5, 4, v64
    s_lshl_b32 s33, s23, 1
    s_lshl_b32 s36, s20, 7
    s_add_u32 s33, s33, s36
    s_mov_b32 s37, 0x3f803f80
    v_mov_b32 v65, 0
    v_mov_b32 v66, 0
    v_mov_b32 v67, 0
    v_mov_b32 v68, 0
    """)
    for jj in range(7):
        a(f"s_waitcnt vmcnt({6-jj+1})" if False else f"s_waitcnt vmcnt({max(6-jj,0)})")
        for k in range(4):
            r = XV + 4*jj + k
            a(f"v_dot2c_f32_bf16 v{65+(k&1)}, s37, v{r}")
            a(f"v_dot2c_f32_bf16 v{67+(k&1)}, v{r}, v{r}")
    a("""v_add_f32 v65, v65, v66
    v_add_f32 v67, v67, v68
    v_add_f32_dpp v65, v65, v65 quad_perm:[1,0,3,2] row_mask:0xf bank_mask:0xf
    v_add_f32_dpp v67, v67, v67 quad_perm:[1,0,3,2] row_mask:0xf bank_mask:0xf
    v_add_f32_dpp v65, v65, v65 quad_perm:[2,3,0,1] row_mask:0xf bank_mask:0xf
    v_add_f32_dpp v67, v67, v67 quad_perm:[2,3,0,1] row_mask:0xf bank_mask:0xf
    v_add_f32_dpp v65, v65, v65 row_half_mirror row_mask:0xf bank_mask:0xf
    v_add_f32_dpp v67, v67, v67 row_half_mirror row_mask:0xf bank_mask:0xf
    """)
    a(f"""v_mul_f32 v65, {f32(1/448)}, v65       ; mean
    v_mul_f32 v67, {f32(1/448)}, v67       ; E[x^2]
    v_fma_f32 v67, -v65, v65, v67    ; var
    v_max_f32 v67, 0, v67
    v_cvt_pk_bf16_f32 v66, v65, v67
    v_lshlrev_b32 v65, 16, v66
    v_and_b32 v67, 0xffff0000, v66
    v_add_f32 v67, {f32(1e-5)}, v67""")
    round_bf16(a, 67)
    a("v_sqrt_f32 v67, v67")
    round_bf16(a, 67)
    a("""v_rcp_f32 v67, v67
    v_mul_f32 v65, v65, v67
    """)
    for k in range(4):
        a(f"""v_lshlrev_b32 v74, 16, v{XV+k}
        v_and_b32 v75, 0xffff0000, v{XV+k}
        v_fma_f32 v74, v74, v67, -v65
        v_fma_f32 v75, v75, v67, -v65
        v_cvt_pk_bf16_f32 v{70+k}, v74, v75""")
    a("""ds_write2_b64 v62, v[70:71], v[72:73] offset0:0 offset1:4
    s_waitcnt lgkmcnt(0)
    s_barrier""")
    AO = 8
    for mu in range(2):
        for ks in range(2):
            for h in range(2):
                r = AO + 8*mu + 4*ks + 2*h
                a(f"ds_read_b64_tr_b16 v[{r}:{r+1}], v63 offset:{ks*5120 + h*2560 + 32*mu}")
    for mu in range(2):
        for ks in range(2):
            a(f"s_waitcnt lgkmcnt({6 - 4*mu - 2*ks})")
            r = AO + 8*mu + 4*ks
            c = "0" if ks == 0 else f"v[{24+4*mu}:{27+4*mu}]"
            a(f"v_mfma_f32_16x16x32_bf16 v[{24+4*mu}:{27+4*mu}], v[{r}:{r+3}], v[{CB+4*ks}:{CB+4*ks+3}], {c}")
    a(f"""v_cvt_pk_bf16_f32 v32, v24, v25
    v_cvt_pk_bf16_f32 v33, v26, v27
    v_cvt_pk_bf16_f32 v34, v28, v29
    v_cvt_pk_bf16_f32 v35, v30, v31
    buffer_store_dwordx4 v[32:35], v64, s[12:15], s33 offen
    v_mov_b32 v40, -1
    v_mov_b32 v41, -1
    v_mov_b32 v42, -1
    v_mov_b32 v43, -1
    v_lshlrev_b32 v44, 4, v0
    s_mul_i32 s32, s2, 1536
    s_add_u32 s32, s32, {WS_KEY}
    v_cmp_gt_u32 vcc, 96, v0
    s_and_saveexec_b64 s[34:35], vcc
    s_cbranch_execz kA_end
    buffer_store_dwordx4 v[40:43], v44, s[12:15], s32 offen
    s_endpgm""")
    a.label("kA_mod")
    a(f"""v_readfirstlane_b32 s20, v0
    s_load_dwordx2 s[4:5], s[0:1], {KA_WMOD}
    s_load_dwordx2 s[6:7], s[0:1], {KA_WS}
    s_load_dwordx2 s[16:17], s[0:1], {KA_C}
    s_cmp_ge_u32 s20, 256
    s_cbranch_scc1 kA_end
    s_sub_u32 s21, s2, {NMAIN}
    v_lshrrev_b32 v1, 2, v0
    v_and_b32 v2, 3, v0
    s_movk_i32 s22, 5376
    v_mul_lo_u32 v3, v1, s22
    v_lshl_add_u32 v3, v2, 4, v3
    v_lshlrev_b32 v4, 1, v1          ; c offset
    s_lshl_b32 s23, s21, 6
    s_waitcnt lgkmcnt(0)""")
    srd(a, 8, 4, 448 * 2688 * 2)
    srd(a, 12, 6, WS_SIZE_USED)
    srd(a, 24, 16, 896)
    for jj in range(7):
        a(f"buffer_load_ushort v{40+jj}, v4, s[24:27], 0 offen offset:{128*jj}")
    for jj in range(7):
        a(f"""s_add_u32 s28, s23, {jj*64*5376}
        buffer_load_dwordx4 v[{8+4*jj}:{11+4*jj}], v3, s[8:11], s28 offen""")
    a("s_waitcnt vmcnt(7)")
    for jj in range(7):
        v = 40 + jj
        a(f"""v_lshlrev_b32 v{v}, 16, v{v}
        v_mul_f32 v48, {f32(-math.log2(math.e))}, v{v}
        v_exp_f32 v48, v48
        v_add_f32 v48, 1.0, v48
        v_rcp_f32 v48, v48
        v_mul_f32 v{v}, v{v}, v48""")
        round_bf16(a, v)
    for jj in range(7):
        a(f"s_waitcnt vmcnt({6-jj})")
        for k in range(4):
            r = 8 + 4*jj + k
            op = "v_mul_f32" if jj == 0 else "v_fmac_f32"
            a(f"""v_lshlrev_b32 v48, 16, v{r}
            v_and_b32 v49, 0xffff0000, v{r}
            {op} v{50+2*k}, v48, v{40+jj}
            {op} v{51+2*k}, v49, v{40+jj}""")
    for i in range(4):
        a(f"v_permlane32_swap_b32 v{50+i}, v{54+i}")
    for i in range(4):
        a(f"v_add_f32 v{50+i}, v{50+i}, v{54+i}")
    for i in range(2):
        a(f"v_permlane16_swap_b32 v{50+i}, v{52+i}")
    for i in range(2):
        a(f"v_add_f32 v{50+i}, v{50+i}, v{52+i}")
    for sh in (8, 4):
        for i in range(2):
            a(f"v_add_f32_dpp v{50+i}, v{50+i}, v{50+i} row_ror:{sh} row_mask:0xf bank_mask:0xf")
    a(f"""v_lshrrev_b32 v52, 6, v0
    v_lshlrev_b32 v52, 7, v52        ; wave*128
    v_lshl_add_u32 v52, v2, 5, v52   ; + u*32
    v_bfe_u32 v53, v0, 4, 2
    v_lshl_add_u32 v52, v53, 3, v52
    ds_write_b64 v52, v[50:51]
    s_waitcnt lgkmcnt(0)
    s_barrier
    s_cmp_ge_u32 s20, 64
    s_cbranch_scc1 kA_end
    v_lshlrev_b32 v52, 2, v0
    ds_read_b32 v54, v52
    ds_read_b32 v55, v52 offset:128
    ds_read_b32 v56, v52 offset:256
    ds_read_b32 v57, v52 offset:384
    s_mul_i32 s24, s21, 4682
    s_lshr_b32 s24, s24, 16
    s_cmp_eq_u32 s24, 1
    s_cselect_b32 s25, 1.0, 0
    s_cmp_eq_u32 s24, 4
    s_cselect_b32 s25, 1.0, s25
    s_lshl_b32 s26, s21, 7
    s_add_u32 s26, s26, {WS_MOD}
    s_waitcnt lgkmcnt(0)
    v_add_f32 v54, v54, v55
    v_add_f32 v56, v56, v57
    v_add_f32 v54, v54, v56""")
    round_bf16(a, 54)
    a("v_add_f32 v54, s25, v54")
    round_bf16(a, 54)
    a("""v_cmp_gt_u32 vcc, 32, v0
    s_and_saveexec_b64 s[34:35], vcc
    buffer_store_dword v54, v52, s[12:15], s26 offen""")
    a.label("kA_end")
    a("s_endpgm")
    return dict(grid=NMAIN + NMOD, block=512, lds=10240, vgpr=80, sgpr=48)

from genB import kernel_B

def build(opt):
    hdr = open("cdna_kernels/%s.s.ref" % NAME).read().split("; Override launch")[0]
    ks = []
    body = ""
    for nm, fn in (("kA_kernel", kernel_A), ("kB_kernel", kernel_B)):
        if opt.get("only") and nm not in opt["only"]: continue
        a = Asm()
        info = fn(a, opt)
        ks.append((nm, info))
        body += f".globl {nm}\n.p2align 8\n.type {nm},@function\n" + a.text()
    out = hdr
    for nm, info in ks:
        out += f"; @launch kernel={nm} grid=({info['grid']},1,1) block=({info['block']},1,1) lds={info['lds']}\n"
    out += '.amdgcn_target "amdgcn-amd-amdhsa--gfx950"\n.text\n' + body
    out += '.section .rodata,"a"\n'
    for nm, info in ks:
        v = info['vgpr']
        out += f""".p2align 6
.amdhsa_kernel {nm}
  .amdhsa_next_free_vgpr {v}
  .amdhsa_next_free_sgpr {info['sgpr']}
  .amdhsa_accum_offset {(v+3)//4*4}
  .amdhsa_group_segment_fixed_size 0
  .amdhsa_kernarg_size 120
  .amdhsa_user_sgpr_count 2
  .amdhsa_user_sgpr_kernarg_segment_ptr 1
  .amdhsa_system_sgpr_workgroup_id_x 1
  .amdhsa_float_denorm_mode_32 3
  .amdhsa_float_denorm_mode_16_64 3
.end_amdhsa_kernel
"""
    return out

if __name__ == "__main__":
    opt = {}
    outp = sys.argv[1] if len(sys.argv) > 1 else "cdna_kernels/%s.s" % NAME
    for kv in sys.argv[2:]:
        k, v = kv.split("=")
        opt[k] = v
    open(outp, "w").write(build(opt))
    print("wrote", outp)
```

```python
import sys, math, struct
from asmlib import Asm

NAME = "adaLN_cond__spectral_fnet__moe_arch_mod__prompt"
S, D = 2048, 448
KA_X, KA_WR, KA_WG, KA_WU, KA_WD, KA_C, KA_WMOD, KA_OUT, KA_DBG, KA_WS = 0, 48, 56, 64, 72, 80, 88, 96, 104, 112
WS_A = 0
WS_MOD = 0x1C0000
WS_KEY = 0x1C3000
WS_CAND = 0x1C4000
NCAND = 129
WS_PART = WS_CAND + NCAND * 1792
NMLP = 56
WS_END = WS_PART + NMLP * 1792
WS_SIZE_USED = 0x220000
assert WS_END <= WS_KEY + 224 * 1536 <= WS_SIZE_USED

def f32(x):
    return "0x%08x" % struct.unpack("<I", struct.pack("<f", x))[0]

def srd(a, dst, base, nbytes):
    a(f"""s_mov_b32 s{dst}, s{base}
    s_and_b32 s{dst+1}, s{base+1}, 0xffff
    s_mov_b32 s{dst+2}, {nbytes}
    s_mov_b32 s{dst+3}, 0x00020000""")

def round_bf16(a, v, tmp=None):
    a(f"v_cvt_pk_bf16_f32 v{v}, v{v}, v{v}")
    a(f"v_lshlrev_b32 v{v}, 16, v{v}")

def kernel_A(a, opt):
    NMAIN = 224; NMOD = 84
    a.label("kA_kernel")
    a(f"""s_cmp_ge_u32 s2, {NMAIN+NMOD}
    s_cbranch_scc1 kA_end
    s_cmp_ge_u32 s2, {NMAIN}
    s_cbranch_scc1 kA_mod
    s_load_dwordx2 s[4:5], s[0:1], {KA_X}
    s_load_dwordx2 s[6:7], s[0:1], {KA_WS}
    s_lshr_b32 s20, s2, 5            ; q = chunk
    s_and_b32 s21, s2, 31            ; s2idx
    v_lshrrev_b32 v1, 3, v0          ; s1
    v_and_b32 v2, 7, v0              ; u
    s_movk_i32 s22, 28672
    v_mul_lo_u32 v3, v1, s22
    v_lshl_add_u32 v3, v2, 4, v3
    s_mul_i32 s23, s21, 896          ; s2*896
    """)
    for jj in range(7):
        a(f"""s_add_u32 s{24+jj}, s20, {jj}
        s_cmp_ge_u32 s{24+jj}, 7
        s_cselect_b32 s31, 7, 0
        s_sub_u32 s{24+jj}, s{24+jj}, s31
        s_lshl_b32 s{24+jj}, s{24+jj}, 7
        s_add_u32 s{24+jj}, s{24+jj}, s23""")
    a("s_waitcnt lgkmcnt(0)")
    srd(a, 8, 4, S * D * 2)
    srd(a, 12, 6, WS_SIZE_USED)
    XV = 8
    for jj in range(7):
        a(f"buffer_load_dwordx4 v[{XV+4*jj}:{XV+4*jj+3}], v3, s[8:11], s{24+jj} offen")
    a(f"""v_and_b32 v4, 15, v0             ; n
    v_bfe_u32 v5, v0, 4, 2           ; G
    v_bfe_u32 v6, v0, 6, 2           ; nu
    v_lshrrev_b32 v7, 8, v0          ; eta
    v_lshl_add_u32 v45, v6, 4, v4    ; j = 16nu+n
    v_lshrrev_b32 v46, 1, v45        ; g
    v_and_b32 v47, 1, v45            ; ri
    v_cvt_f32_u32 v48, v46
    v_cvt_f32_u32 v49, v47
    v_mul_f32 v48, {f32(1/64)}, v48     ; g/64
    v_mul_f32 v49, 0.25, v49         ; phase
    v_cmp_eq_u32 vcc, 1, v45
    v_cndmask_b32 v48, v48, 0.5, vcc    ; j==1 -> g_eff=32
    v_cndmask_b32 v49, v49, 0, vcc
    v_lshlrev_b32 v50, 2, v5
    v_cvt_f32_u32 v50, v50           ; 4G
    v_fma_f32 v49, v48, v50, v49     ; angle at s1 = 4G
    """.replace("0.25", f32(0.25)))
    CB = 52
    for ks in range(2):
        for h in range(2):
            for rp in range(2):
                s1a = 32*ks + 16*h + 2*rp
                a(f"""v_fmamk_f32 v60, v48, {f32(s1a)}, v49
                v_fmamk_f32 v61, v48, {f32(s1a+1)}, v49
                v_cos_f32 v60, v60
                v_cos_f32 v61, v61
                v_cvt_pk_bf16_f32 v{CB+4*ks+2*h+rp}, v60, v61""")
    a(f"""v_mul_u32_u24 v62, 160, v1
    v_lshrrev_b32 v63, 2, v2
    v_lshl_add_u32 v62, v63, 6, v62
    v_and_b32 v63, 3, v2
    v_lshl_add_u32 v62, v63, 3, v62
    v_bfe_u32 v63, v0, 2, 2          ; rho
    v_lshl_add_u32 v63, v5, 2, v63   ; 4G+rho
    v_mul_u32_u24 v63, 160, v63
    v_and_b32 v64, 3, v0             ; cc
    v_lshl_add_u32 v63, v64, 3, v63
    v_lshl_add_u32 v63, v7, 6, v63
    v_lshl_add_u32 v64, v46, 6, v47
    v_mul_u32_u24 v64, 896, v64
    v_lshl_add_u32 v64, v7, 6, v64
    v_lshl_add_u32 v64, v5, 4, v64
    s_lshl_b32 s33, s23, 1
    s_lshl_b32 s36, s20, 7
    s_add_u32 s33, s33, s36
    s_mov_b32 s37, 0x3f803f80
    v_mov_b32 v65, 0
    v_mov_b32 v66, 0
    v_mov_b32 v67, 0
    v_mov_b32 v68, 0
    """)
    for jj in range(7):
        a(f"s_waitcnt vmcnt({6-jj+1})" if False else f"s_waitcnt vmcnt({max(6-jj,0)})")
        for k in range(4):
            r = XV + 4*jj + k
            a(f"v_dot2c_f32_bf16 v{65+(k&1)}, s37, v{r}")
            a(f"v_dot2c_f32_bf16 v{67+(k&1)}, v{r}, v{r}")
    a("""v_add_f32 v65, v65, v66
    v_add_f32 v67, v67, v68
    v_add_f32_dpp v65, v65, v65 quad_perm:[1,0,3,2] row_mask:0xf bank_mask:0xf
    v_add_f32_dpp v67, v67, v67 quad_perm:[1,0,3,2] row_mask:0xf bank_mask:0xf
    v_add_f32_dpp v65, v65, v65 quad_perm:[2,3,0,1] row_mask:0xf bank_mask:0xf
    v_add_f32_dpp v67, v67, v67 quad_perm:[2,3,0,1] row_mask:0xf bank_mask:0xf
    v_add_f32_dpp v65, v65, v65 row_half_mirror row_mask:0xf bank_mask:0xf
    v_add_f32_dpp v67, v67, v67 row_half_mirror row_mask:0xf bank_mask:0xf
    """)
    a(f"""v_mul_f32 v65, {f32(1/448)}, v65       ; mean
    v_mul_f32 v67, {f32(1/448)}, v67       ; E[x^2]
    v_fma_f32 v67, -v65, v65, v67    ; var
    v_max_f32 v67, 0, v67
    v_cvt_pk_bf16_f32 v66, v65, v67
    v_lshlrev_b32 v65, 16, v66
    v_and_b32 v67, 0xffff0000, v66
    v_add_f32 v67, {f32(1e-5)}, v67""")
    round_bf16(a, 67)
    a("v_sqrt_f32 v67, v67")
    round_bf16(a, 67)
    a("""v_rcp_f32 v67, v67
    v_mul_f32 v65, v65, v67
    """)
    for k in range(4):
        a(f"""v_lshlrev_b32 v74, 16, v{XV+k}
        v_and_b32 v75, 0xffff0000, v{XV+k}
        v_fma_f32 v74, v74, v67, -v65
        v_fma_f32 v75, v75, v67, -v65
        v_cvt_pk_bf16_f32 v{70+k}, v74, v75""")
    a("""ds_write2_b64 v62, v[70:71], v[72:73] offset0:0 offset1:4
    s_waitcnt lgkmcnt(0)
    s_barrier""")
    AO = 8
    for mu in range(2):
        for ks in range(2):
            for h in range(2):
                r = AO + 8*mu + 4*ks + 2*h
                a(f"ds_read_b64_tr_b16 v[{r}:{r+1}], v63 offset:{ks*5120 + h*2560 + 32*mu}")
    for mu in range(2):
        for ks in range(2):
            a(f"s_waitcnt lgkmcnt({6 - 4*mu - 2*ks})")
            r = AO + 8*mu + 4*ks
            c = "0" if ks == 0 else f"v[{24+4*mu}:{27+4*mu}]"
            a(f"v_mfma_f32_16x16x32_bf16 v[{24+4*mu}:{27+4*mu}], v[{r}:{r+3}], v[{CB+4*ks}:{CB+4*ks+3}], {c}")
    a(f"""v_cvt_pk_bf16_f32 v32, v24, v25
    v_cvt_pk_bf16_f32 v33, v26, v27
    v_cvt_pk_bf16_f32 v34, v28, v29
    v_cvt_pk_bf16_f32 v35, v30, v31
    buffer_store_dwordx4 v[32:35], v64, s[12:15], s33 offen
    v_mov_b32 v40, -1
    v_mov_b32 v41, -1
    v_mov_b32 v42, -1
    v_mov_b32 v43, -1
    v_lshlrev_b32 v44, 4, v0
    s_mul_i32 s32, s2, 1536
    s_add_u32 s32, s32, {WS_KEY}
    v_cmp_gt_u32 vcc, 96, v0
    s_and_saveexec_b64 s[34:35], vcc
    s_cbranch_execz kA_end
    buffer_store_dwordx4 v[40:43], v44, s[12:15], s32 offen
    s_endpgm""")
    a.label("kA_mod")
    a(f"""v_readfirstlane_b32 s20, v0
    s_load_dwordx2 s[4:5], s[0:1], {KA_WMOD}
    s_load_dwordx2 s[6:7], s[0:1], {KA_WS}
    s_load_dwordx2 s[16:17], s[0:1], {KA_C}
    s_cmp_ge_u32 s20, 256
    s_cbranch_scc1 kA_end
    s_sub_u32 s21, s2, {NMAIN}
    v_lshrrev_b32 v1, 2, v0
    v_and_b32 v2, 3, v0
    s_movk_i32 s22, 5376
    v_mul_lo_u32 v3, v1, s22
    v_lshl_add_u32 v3, v2, 4, v3
    v_lshlrev_b32 v4, 1, v1          ; c offset
    s_lshl_b32 s23, s21, 6
    s_waitcnt lgkmcnt(0)""")
    srd(a, 8, 4, 448 * 2688 * 2)
    srd(a, 12, 6, WS_SIZE_USED)
    srd(a, 24, 16, 896)
    for jj in range(7):
        a(f"buffer_load_ushort v{40+jj}, v4, s[24:27], 0 offen offset:{128*jj}")
    for jj in range(7):
        a(f"""s_add_u32 s28, s23, {jj*64*5376}
        buffer_load_dwordx4 v[{8+4*jj}:{11+4*jj}], v3, s[8:11], s28 offen""")
    a("s_waitcnt vmcnt(7)")
    for jj in range(7):
        v = 40 + jj
        a(f"""v_lshlrev_b32 v{v}, 16, v{v}
        v_mul_f32 v48, {f32(-math.log2(math.e))}, v{v}
        v_exp_f32 v48, v48
        v_add_f32 v48, 1.0, v48
        v_rcp_f32 v48, v48
        v_mul_f32 v{v}, v{v}, v48""")
        round_bf16(a, v)
    for jj in range(7):
        a(f"s_waitcnt vmcnt({6-jj})")
        for k in range(4):
            r = 8 + 4*jj + k
            op = "v_mul_f32" if jj == 0 else "v_fmac_f32"
            a(f"""v_lshlrev_b32 v48, 16, v{r}
            v_and_b32 v49, 0xffff0000, v{r}
            {op} v{50+2*k}, v48, v{40+jj}
            {op} v{51+2*k}, v49, v{40+jj}""")
    for i in range(4):
        a(f"v_permlane32_swap_b32 v{50+i}, v{54+i}")
    for i in range(4):
        a(f"v_add_f32 v{50+i}, v{50+i}, v{54+i}")
    for i in range(2):
        a(f"v_permlane16_swap_b32 v{50+i}, v{52+i}")
    for i in range(2):
        a(f"v_add_f32 v{50+i}, v{50+i}, v{52+i}")
    for sh in (8, 4):
        for i in range(2):
            a(f"v_add_f32_dpp v{50+i}, v{50+i}, v{50+i} row_ror:{sh} row_mask:0xf bank_mask:0xf")
    a(f"""v_lshrrev_b32 v52, 6, v0
    v_lshlrev_b32 v52, 7, v52        ; wave*128
    v_lshl_add_u32 v52, v2, 5, v52   ; + u*32
    v_bfe_u32 v53, v0, 4, 2
    v_lshl_add_u32 v52, v53, 3, v52
    ds_write_b64 v52, v[50:51]
    s_waitcnt lgkmcnt(0)
    s_barrier
    s_cmp_ge_u32 s20, 64
    s_cbranch_scc1 kA_end
    v_lshlrev_b32 v52, 2, v0
    ds_read_b32 v54, v52
    ds_read_b32 v55, v52 offset:128
    ds_read_b32 v56, v52 offset:256
    ds_read_b32 v57, v52 offset:384
    s_mul_i32 s24, s21, 4682
    s_lshr_b32 s24, s24, 16
    s_cmp_eq_u32 s24, 1
    s_cselect_b32 s25, 1.0, 0
    s_cmp_eq_u32 s24, 4
    s_cselect_b32 s25, 1.0, s25
    s_lshl_b32 s26, s21, 7
    s_add_u32 s26, s26, {WS_MOD}
    s_waitcnt lgkmcnt(0)
    v_add_f32 v54, v54, v55
    v_add_f32 v56, v56, v57
    v_add_f32 v54, v54, v56""")
    round_bf16(a, 54)
    a("v_add_f32 v54, s25, v54")
    round_bf16(a, 54)
    a("""v_cmp_gt_u32 vcc, 32, v0
    s_and_saveexec_b64 s[34:35], vcc
    buffer_store_dword v54, v52, s[12:15], s26 offen""")
    a.label("kA_end")
    a("s_endpgm")
    return dict(grid=NMAIN + NMOD, block=512, lds=10240, vgpr=80, sgpr=48)

from genB import kernel_B

def build(opt):
    hdr = open("cdna_kernels/%s.s.ref" % NAME).read().split("; Override launch")[0]
    ks = []
    body = ""
    for nm, fn in (("kA_kernel", kernel_A), ("kB_kernel", kernel_B)):
        if opt.get("only") and nm not in opt["only"]: continue
        a = Asm()
        info = fn(a, opt)
        ks.append((nm, info))
        body += f".globl {nm}\n.p2align 8\n.type {nm},@function\n" + a.text()
    out = hdr
    if "E" in opt.get("list", ""):
        ks.append(("kE_kernel", dict(grid=256, block=64, lds=0, vgpr=8, sgpr=16)))
        body += ".globl kE_kernel\n.p2align 8\n.type kE_kernel,@function\nkE_kernel:\n    s_endpgm\n"
    kd = dict(ks)
    for ch in opt.get("list", "AB"):
        nm = f"k{ch}_kernel"; info = kd[nm]
        out += f"; @launch kernel={nm} grid=({info['grid']},1,1) block=({info['block']},1,1) lds={info['lds']}\n"
    out += '.amdgcn_target "amdgcn-amd-amdhsa--gfx950"\n.text\n' + body
    out += '.section .rodata,"a"\n'
    for nm, info in ks:
        v = info['vgpr']
        out += f""".p2align 6
.amdhsa_kernel {nm}
  .amdhsa_next_free_vgpr {v}
  .amdhsa_next_free_sgpr {info['sgpr']}
  .amdhsa_accum_offset {(v+3)//4*4}
  .amdhsa_group_segment_fixed_size 0
  .amdhsa_kernarg_size 120
  .amdhsa_user_sgpr_count 2
  .amdhsa_user_sgpr_kernarg_segment_ptr 1
  .amdhsa_system_sgpr_workgroup_id_x 1
  .amdhsa_float_denorm_mode_32 3
  .amdhsa_float_denorm_mode_16_64 3
.end_amdhsa_kernel
"""
    return out

if __name__ == "__main__":
    opt = {}
    outp = sys.argv[1] if len(sys.argv) > 1 else "cdna_kernels/%s.s" % NAME
    for kv in sys.argv[2:]:
        k, v = kv.split("=")
        opt[k] = v
    open(outp, "w").write(build(opt))
    print("wrote", outp)
```

```python
import re

def _regs(tok):
    tok = tok.strip()
    neg = tok.lstrip('-')
    if neg.startswith('abs(') or neg.startswith('|'):
        neg = neg.replace('abs(', '').replace(')', '').replace('|', '')
    tok = neg
    m = re.fullmatch(r'([vsa])\[(\d+):(\d+)\]', tok)
    if m:
        return [(m.group(1), i) for i in range(int(m.group(2)), int(m.group(3)) + 1)]
    m = re.fullmatch(r'([vsa])(\d+)', tok)
    if m:
        return [(m.group(1), int(m.group(2)))]
    if tok == 'vcc':
        return [('s', 'vcc_lo'), ('s', 'vcc_hi')]
    if tok in ('vcc_lo', 'vcc_hi'):
        return [('s', tok)]
    if tok == 'exec':
        return [('x', 'exec')]
    if tok in ('exec_lo', 'exec_hi'):
        return [('x', 'exec')]
    if tok == 'm0':
        return [('m', 'm0')]
    return []

TRANS = ('v_exp_f32', 'v_log_f32', 'v_rcp_f32', 'v_rsq_f32', 'v_sqrt_f32', 'v_sin_f32', 'v_cos_f32')

class Ins:
    def __init__(self, text):
        self.text = text
        t = text.split(';')[0].strip()
        self.is_label = t.endswith(':')
        self.is_dir = t.startswith('.') and not self.is_label
        self.mn = ''
        self.w = set(); self.r = set()
        self.srcC = set(); self.srcAB = set(); self.data = set()
        self.scalar_src = set()
        if self.is_label or self.is_dir or not t:
            self.kind = 'none'; return
        parts = t.split(None, 1)
        self.mn = mn = parts[0]
        rest = parts[1] if len(parts) > 1 else ''
        ops = []; cur = ''; depth = 0
        for ch in rest:
            if ch in '[(' : depth += 1
            if ch in '])' : depth -= 1
            if ch == ',' and depth == 0:
                ops.append(cur.strip()); cur = ''
            else:
                cur += ch
        if cur.strip(): ops.append(cur.strip())
        mods = ''
        if ops:
            last = ops[-1].split(None, 1)
            ops[-1] = last[0]
            mods = last[1] if len(last) > 1 else ''
        self.ops = ops; self.mods = mods
        self.dpp = mn.endswith('_dpp') or 'row_' in mods or 'quad_perm' in mods
        R = lambda k: set(_regs(ops[k])) if k < len(ops) else set()
        allr = lambda ks: set().union(*[R(k) for k in ks]) if ks else set()
        n = len(ops)
        if mn.startswith('v_mfma'):
            self.kind = 'mfma'
            self.w = R(0); self.srcAB = R(1) | R(2); self.srcC = R(3); self.r = self.srcAB | self.srcC
            self.passes = 8 if '32x32' in mn else 4
        elif mn.startswith('v_'):
            self.kind = 'valu'
            if mn.startswith('v_cmp'):
                self.w = R(0); self.r = allr(range(1, n))
                if mn.startswith('v_cmpx'): self.w |= {('x', 'exec')}
            elif mn.startswith(('v_readlane', 'v_readfirstlane')):
                self.w = R(0); self.r = allr(range(1, n))
            elif mn.startswith('v_permlane') and 'swap' in mn:
                self.w = R(0) | R(1); self.r = R(0) | R(1)
            elif mn.startswith(('v_add_co', 'v_sub_co', 'v_addc_co', 'v_subb_co')):
                self.w = R(0) | R(1); self.r = allr(range(2, n))
            else:
                self.w = R(0); self.r = allr(range(1, n))
                if mn.startswith(('v_fmac', 'v_dot2c', 'v_writelane')) or self.dpp:
                    self.r |= R(0)
            self.trans = mn.replace('_e32', '').replace('_e64', '') in TRANS
        elif mn.startswith(('buffer_', 'global_')):
            self.kind = 'vmem'
            if 'lds' in mods.split() or mn.startswith('global_load_lds'):
                self.r = allr(range(n)) | {('m', 'm0')}
                self.ldsdma = True
            elif '_load' in mn:
                self.w = R(0); self.r = allr(range(1, n))
            elif '_atomic' in mn:
                self.r = allr(range(n))
                if 'sc0' in mods.split(): self.w = R(0)
            else:
                self.r = allr(range(n))
                if mn.startswith('buffer_store'): self.data = R(0)
                elif mn.startswith('global_store'): self.data = R(1)
        elif mn.startswith('ds_'):
            self.kind = 'ds'
            if mn.startswith(('ds_read', 'ds_bpermute', 'ds_permute', 'ds_swizzle')):
                self.w = R(0); self.r = allr(range(1, n))
            else:
                self.r = allr(range(n))
        elif mn.startswith('s_'):
            self.kind = 'salu'
            if mn.startswith(('s_cmp', 's_cbranch', 's_branch', 's_waitcnt', 's_nop', 's_barrier', 's_endpgm', 's_sleep', 's_setprio', 's_bitcmp')):
                self.r = allr(range(n))
            else:
                self.w = R(0); self.r = allr(range(1, n))
                if 'saveexec' in mn: self.w |= {('x', 'exec')}
        else:
            raise ValueError('unknown instr: ' + text)

    def states(self):
        if self.kind == 'none': return 0
        if self.mn == 's_nop': return int(self.ops[0], 0) + 1
        return 1

def need(p, c):
    n = 0
    vw = {x for x in p.w if x[0] in 'va'}
    sw = {x for x in p.w if x[0] == 's'}
    if p.kind == 'valu':
        if c.kind == 'mfma' and vw & c.r: n = max(n, 2)
        if c.kind == 'valu' and c.dpp and vw & c.r: n = max(n, 2)
        if c.kind == 'valu' and c.mn.startswith('v_permlane') and vw & c.r: n = max(n, 2)
        if c.kind == 'valu' and c.mn.startswith(('v_readlane', 'v_readfirstlane')) and vw & c.r: n = max(n, 1)
        if getattr(p, 'trans', False) and c.kind in ('valu', 'mfma') and vw & c.r: n = max(n, 1)
        if p.mn.startswith('v_dot') and c.kind in ('valu', 'mfma', 'vmem', 'ds') and vw & (c.r | c.w):
            if c.mn == p.mn and not (vw & (set(_regs(c.ops[1])) | set(_regs(c.ops[2])))): pass
            else: n = max(n, 3)
        if 'sdwa' in p.mn and c.kind == 'valu' and vw & (c.r | c.w): n = max(n, 1)
        if sw:
            if c.kind == 'valu' and sw & c.r:
                n = max(n, 4 if c.mn.startswith(('v_readlane', 'v_writelane')) else 2)
            if c.kind == 'vmem' and sw & c.r: n = max(n, 5)
            if c.kind == 'salu' and sw & c.r: n = max(n, 1)
        if ('x', 'exec') in p.w:
            if c.kind == 'valu' and c.dpp: n = max(n, 5)
            if c.kind == 'valu' and c.mn.startswith(('v_readlane', 'v_readfirstlane', 'v_writelane', 'v_permlane')): n = max(n, 4)
            if c.kind == 'mfma': n = max(n, 4)
    if p.kind == 'mfma':
        big = {4: 8, 8: 12}[p.passes]
        if c.kind == 'mfma':
            if vw & c.srcAB: n = max(n, big)
            if vw & c.srcC:
                if c.srcC == p.w and c.passes == p.passes: pass
                else: n = max(n, {4: 6, 8: 10}[p.passes])
            elif vw & c.w: n = max(n, big)
        elif c.kind == 'valu':
            if vw & (c.r | c.w): n = max(n, big)
            if p.srcC & c.w: n = max(n, {4: 3, 8: 7}[p.passes])
        elif c.kind in ('vmem', 'ds'):
            if vw & (c.r | c.w): n = max(n, big)
    if p.kind == 'vmem' and p.data and len(p.data) >= 3:
        if p.data & c.w: n = max(n, 2)
    if p.kind == 'salu' and ('m', 'm0') in p.w:
        if c.kind == 'vmem' and getattr(c, 'ldsdma', False): n = max(n, 1)
    return n

class Asm:
    def __init__(self, diag=False, dbg_base=0):
        self.lines = []
        self.diag = diag; self.dbg_base = dbg_base; self.nfl = 0
    def stamp(self, k):
        if not self.diag: return
        self(f"s_memrealtime s[70:71]\ns_waitcnt lgkmcnt(0)\ns_mov_b32 s{72+k}, s70")
    def stamp_init(self):
        if not self.diag: return
        for k in range(16): self(f"s_mov_b32 s{72+k}, 0")
        self("v_readfirstlane_b32 s88, v0\ns_lshr_b32 s88, s88, 6")
        self("s_getreg_b32 s87, hwreg(HW_REG_XCC_ID)\ns_getreg_b32 s86, hwreg(HW_REG_HW_ID)")
        self.stamp(0)
    def endpgm(self, k=13):
        if self.diag:
            self("s_waitcnt vmcnt(0)")
            self.stamp(k)
            self("s_mov_b64 exec, -1")
            for j in range(16): self(f"v_writelane_b32 v1, s{72+j}, {j}")
            self(f"""s_lshl_b32 s89, s2, 3
            s_add_u32 s89, s89, s88
            s_lshl_b32 s89, s89, 6
            s_add_u32 s89, s89, {self.dbg_base}
            v_mbcnt_lo_u32_b32 v2, -1, 0
            v_lshlrev_b32 v2, 2, v2
            s_mov_b64 exec, 0xffff
            buffer_store_dword v1, v2, s[12:15], s89 offen""")
        self("s_endpgm")
    def __call__(self, text):
        for ln in text.split('\n'):
            ln = ln.strip()
            if not ln: continue
            if ln.startswith('@stamp'):
                self.stamp(int(ln.split()[1])); continue
            if ln.startswith('@init'):
                self.stamp_init(); continue
            if ln.startswith('@end'):
                self.endpgm(); continue
            if ln.startswith(';'):
                self.lines.append(Ins('')); self.lines[-1].text = ln; continue
            self._emit(Ins(ln))
    def _emit(self, ins):
        if ins.kind != 'none':
            dist = 0; req = 0
            for p in reversed(self.lines):
                if p.kind == 'none': continue
                if p.mn in ('s_branch', 's_endpgm'): break
                k = need(p, ins) - dist
                req = max(req, k)
                dist += p.states()
                if dist >= 24: break
            while req > 0:
                k = min(req, 16)
                self.lines.append(Ins(f's_nop {k-1}'))
                req -= k
        self.lines.append(ins)
    def label(self, name):
        self.lines.append(Ins(name + ':'))
    def text(self):
        out = []
        for i in self.lines:
            out.append(i.text if (i.is_label or i.is_dir) else '    ' + i.text)
        return '\n'.join(out) + '\n'
```

```python
import math, struct
S, D = 2048, 448
KA_X, KA_WR, KA_WG, KA_WU, KA_WD, KA_C, KA_WMOD, KA_OUT, KA_DBG, KA_WS = 0, 48, 56, 64, 72, 80, 88, 96, 104, 112
WS_MOD = 0x1C0000
WS_KEY = 0x1C3000
WS_CAND = 0x1C4000
NCAND = 129
WS_PART = WS_CAND + NCAND * 1792
NMLP = 56
WS_SIZE_USED = 0x400000
SPIN = 1 << 20

def f32(x):
    return "0x%08x" % struct.unpack("<I", struct.pack("<f", x))[0]
def srd(a, dst, base, nbytes):
    a(f"""s_mov_b32 s{dst}, s{base}
    s_and_b32 s{dst+1}, s{base+1}, 0xffff
    s_mov_b32 s{dst+2}, {nbytes}
    s_mov_b32 s{dst+3}, 0x00020000""")
def round_bf16(a, v):
    a(f"v_cvt_pk_bf16_f32 v{v}, v{v}, v{v}")
    a(f"v_lshlrev_b32 v{v}, 16, v{v}")

L_COEF = 0
L_KEY = 12 * 1024
L_TILE = L_KEY + 64
L_XB = L_TILE + 64 * 928
L_END = L_XB + 8 * 684 * 4
M_GU = 0
M_H = 64
M_GATE = 4096
M_UP = 28672
M_DOWN = M_GATE + 57344
assert M_DOWN + 28672 <= L_END

CA1, SA = 8, 24
GA, SB, CB1, GB, WR = 40, 48, 56, 64, 72
XR = 76
P0, P1, Q = 84, 92, 100
T2B, H1A, H2B = 108, 116, 124
TWC, TWS = 156, 166
AOP = 176
ACC = 208
BOP, TMP = 224, 232

def kernel_B(a, opt):
    a.label("kB_kernel")
    a(f"""s_cmp_ge_u32 s2, {NCAND+NMLP}
    s_cbranch_scc1 kB_end
    @init
    s_cmp_ge_u32 s2, {NCAND}
    s_cbranch_scc1 kB_mlp
    s_load_dwordx2 s[6:7], s[0:1], {KA_WS}
    s_load_dwordx2 s[4:5], s[0:1], {KA_X}
    s_load_dwordx2 s[16:17], s[0:1], {KA_OUT}
    s_load_dwordx2 s[18:19], s[0:1], {KA_WR}
    v_readfirstlane_b32 s28, v0
    v_and_b32 v1, 63, v0
    v_and_b32 v2, 15, v0
    v_bfe_u32 v3, v0, 4, 2
    v_lshlrev_b32 v242, 4, v1        ; lane*16
    s_lshr_b32 s28, s28, 6           ; wave
    s_and_b32 s29, s2, 7
    s_lshr_b32 s35, s2, 5
    s_and_b32 s35, s35, 3
    s_lshl_b32 s35, s35, 3
    s_add_u32 s29, s29, s35          ; g
    s_bfe_u32 s35, s2, 0x20003       ; qtr
    s_lshl_b32 s30, s35, 9
    s_add_u32 s30, s30, s29
    s_mov_b32 s31, 64
    s_mov_b32 s32, 1.0
    s_mov_b32 s33, 1.0
    s_mov_b32 s34, 0
    s_cmp_lg_u32 s29, 0
    s_cbranch_scc1 kB_ids_done
    s_mov_b32 s33, 0                 ; mode 1
    s_cmp_lt_u32 s35, 2
    s_cbranch_scc1 kB_mode1
    s_sub_u32 s30, s30, {1024-32}
    s_mov_b32 s32, 0
    s_mov_b32 s34, 1.0""")
    a.label("kB_mode1")
    a("""s_cmp_lg_u32 s2, 128
    s_cbranch_scc1 kB_ids_done
    s_movk_i32 s30, 1024
    s_mov_b32 s31, 0""")
    a.label("kB_ids_done")
    a(f"""s_mul_i32 s36, s31, s28
    s_add_u32 s36, s36, s30          ; t
    s_sub_u32 s37, 2048, s36
    s_and_b32 s37, s37, 2047         ; t'
    s_lshl_b32 s38, s29, 6
    s_lshl_b32 s39, s28, 3
    s_add_u32 s38, s38, s39
    s_mul_i32 s38, s38, 896
    s_mul_i32 s39, s39, 928
    s_add_u32 s39, s39, {L_TILE}
    s_waitcnt lgkmcnt(0)""")
    srd(a, 12, 6, WS_SIZE_USED)
    a("s_mov_b32 exec_lo, 0xffffffff\n s_mov_b32 exec_hi, 0xffffff")
    for jj in range(8):
        a(f"""s_mov_b32 m0, s39
        s_add_u32 s39, s39, 928
        buffer_load_dwordx4 v242, s[12:15], s38 offen lds
        s_add_u32 s38, s38, 896""")
    a("s_mov_b64 exec, -1")
    a("@stamp 1")
    srd(a, 8, 4, S * D * 2)
    srd(a, 20, 16, S * D * 2)
    srd(a, 24, 18, 896)
    a(f"""v_lshlrev_b32 v240, 5, v2
    v_lshl_add_u32 v240, v3, 3, v240      ; (16n+4G)*2
    v_add_u32 v241, 512, v240
    v_cmp_gt_u32 vcc, 12, v2
    v_mov_b32 v243, 0x20000000
    v_cndmask_b32 v241, v243, v241, vcc
    v_lshlrev_b32 v238, 1, v240
    v_lshlrev_b32 v239, 1, v241
    v_mul_u32_u24 v243, 112, v3
    s_lshl_b32 s40, s28, 4
    s_add_u32 s40, s40, {WS_MOD + 448*4}
    """)
    nl = 0
    for tau in range(4):
        a(f"buffer_load_dwordx4 v[{CA1+4*tau}:{CA1+4*tau+3}], v243, s[12:15], s40 offen offset:{tau*448}"); nl += 1
    a(f"""s_mul_i32 s41, s36, 896
    s_mul_i32 s42, s37, 896""")
    for sec, reg in ((2, GA), (3, SB), (4, CB1), (5, GB)):
        a(f"""s_mov_b32 s43, {WS_MOD + sec*1792}
        buffer_load_dwordx4 v[{reg}:{reg+3}], v238, s[12:15], s43 offen
        buffer_load_dwordx4 v[{reg+4}:{reg+7}], v239, s[12:15], s43 offen"""); nl += 2
    a(f"""buffer_load_dwordx2 v[{WR}:{WR+1}], v240, s[24:27], 0 offen
    buffer_load_dwordx2 v[{WR+2}:{WR+3}], v241, s[24:27], 0 offen
    buffer_load_dwordx2 v[{XR}:{XR+1}], v240, s[8:11], s41 offen
    buffer_load_dwordx2 v[{XR+2}:{XR+3}], v241, s[8:11], s41 offen
    buffer_load_dwordx2 v[{XR+4}:{XR+5}], v240, s[8:11], s42 offen
    buffer_load_dwordx2 v[{XR+6}:{XR+7}], v241, s[8:11], s42 offen"""); nl += 6
    a(f"""s_cmp_lg_u32 s2, 0
    s_cbranch_scc1 kB_nosa
    s_sub_u32 s43, s40, {448*4}""")
    for tau in range(4):
        a(f"buffer_load_dwordx4 v[{SA+4*tau}:{SA+4*tau+3}], v243, s[12:15], s43 offen offset:{tau*448}")
    a("s_waitcnt vmcnt(4)")
    a.label("kB_nosa")
    a(f"""s_bfe_u32 s44, s28, 0x10001
    s_lshl_b32 s44, s44, 4
    v_add_u32 v244, s44, v2          ; e2' = 16nu+n
    v_sub_u32 v245, 27, v244
    s_cmp_ge_u32 s28, 4
    s_cselect_b64 s[46:47], -1, 0
    v_cndmask_b32 v245, v244, v245, s[46:47]
    v_cvt_f32_i32 v245, v245
    v_mul_f32 v245, {f32(1/28)}, v245
    s_and_b32 s45, s28, 1
    s_lshl_b32 s45, s45, 4
    v_lshl_add_u32 v246, v3, 2, s45  ; d2 base
    v_cmp_gt_u32 s[48:49], 28, v246
    v_cmp_gt_u32 vcc, 28, v244
    s_and_b64 s[48:49], s[48:49], vcc
    v_cvt_f32_u32 v246, v246
    v_mul_f32 v246, v246, v245       ; angle j=0
    """)
    for j in range(4):
        if j: a("v_add_f32 v246, v246, v245")
        a(f"""v_cos_f32 v247, v246
        v_sin_f32 v248, v246
        v_cvt_pk_bf16_f32 v{250+j}, v247, v248
        v_cndmask_b32 v{250+j}, 0, v{250+j}, s[48:49]""")
    a(f"""s_lshl_b32 s45, s28, 10
    v_add_u32 v249, s45, v242
    ds_write_b128 v249, v[250:253] offset:{L_COEF}
    s_cmp_eq_u32 s28, 7
    s_cbranch_scc1 kB_w7coef""")
    a(f"""v_lshrrev_b32 v244, 3, v2
    v_lshlrev_b32 v244, 1, v244
    s_lshl_b32 s45, s28, 2
    v_add_u32 v244, s45, v244        ; d2 (r0=0)
    v_cvt_f32_u32 v244, v244
    v_mul_f32 v244, {f32(1/448)}, v244
    v_add_f32 v245, {f32(1/448)}, v244   ; d2(r0=1)/448
    v_lshlrev_b32 v246, 1, v3
    v_cvt_f32_u32 v246, v246         ; 2G
    """)
    for mu in range(2):
        for p in range(2):
            a(f"v_add_f32 v247, {f32(8*mu+p)}, v246" if (mu or p) else "v_mov_b32 v247, v246")
            for r0 in range(2):
                k = 4*r0 + 2*mu + p
                a(f"""v_mul_f32 v248, v247, v{244+r0}
                v_cos_f32 v{TWC+k}, v248
                v_sin_f32 v{TWS+k}, v248""")
    for r0 in range(2):
        a(f"""v_mul_f32 v248, {f32(16.0)}, v{244+r0}
        v_cos_f32 v{TWC+8+r0}, v248
        v_sin_f32 v{TWS+8+r0}, v248""")
    a("s_branch kB_coefdone")
    a.label("kB_w7coef")
    a(f"""v_and_b32 v244, 7, v2
    v_mul_u32_u24 v244, s31, v244
    v_add_u32 v244, s30, v244        ; t_i
    v_cvt_f32_u32 v244, v244
    v_mul_f32 v244, {f32(1/2048)}, v244
    v_lshrrev_b32 v245, 3, v2
    v_cvt_f32_u32 v245, v245
    v_mul_f32 v245, {f32(0.25)}, v245    ; ro/4
    v_lshlrev_b32 v246, 1, v3
    v_cvt_f32_u32 v246, v246
    v_fma_f32 v245, v246, v244, v245
    """)
    for ks in range(2):
        for dd in range(4):
            s2o = 16*ks + 8*(dd >> 1) + (dd & 1)
            a(f"""v_fmamk_f32 v246, v244, {f32(s2o)}, v245
            v_cos_f32 v247, v246
            v_sin_f32 v248, v246
            v_mul_f32 v249, s34, v247
            v_fmac_f32 v249, s33, v248
            v_mul_f32 v247, s32, v247
            v_cvt_pk_bf16_f32 v{250+dd}, v247, v249""")
        a(f"ds_write_b128 v242, v[250:253] offset:{L_COEF + (8+ks)*1024}")
    a(f"""v_and_b32 v245, 1, v2
    v_cvt_f32_u32 v245, v245
    v_mul_f32 v245, {f32(0.25)}, v245    ; ri/4
    v_cvt_f32_u32 v246, v3           ; G
    """)
    for mu in range(2):
        a(f"""v_lshrrev_b32 v244, 1, v2
        v_add_u32 v244, {8*mu}, v244
        v_cvt_f32_u32 v244, v244
        v_mul_f32 v244, {f32(1/16)}, v244    ; e1/16
        v_fma_f32 v247, v246, v244, v245
        """)
        for tp in range(2):
            a(f"""v_fmamk_f32 v248, v244, {f32(8*tp)}, v247
            v_fmamk_f32 v249, v244, {f32(8*tp+4)}, v247
            v_cos_f32 v254, v248
            v_cos_f32 v255, v249
            v_sin_f32 v248, v248
            v_sin_f32 v249, v249
            v_cvt_pk_bf16_f32 v{AOP+tp}, v254, v255
            v_cvt_pk_bf16_f32 v{AOP+2+tp}, v248, v249""")
        a(f"ds_write_b128 v242, v[{AOP}:{AOP+3}] offset:{L_COEF + (10+mu)*1024}")
    a.label("kB_coefdone")
    a(f"""v_bfe_u32 v244, v0, 2, 2         ; rho
    v_lshl_add_u32 v244, v3, 2, v244
    v_mul_u32_u24 v4, 928, v244
    v_and_b32 v244, 3, v0
    v_mul_u32_u24 v244, 56, v244
    s_lshl_b32 s45, s28, 3
    s_add_u32 s45, s45, {L_TILE}
    v_add3_u32 v4, v4, v244, s45
    v_and_b32 v244, 7, v2
    v_mul_u32_u24 v5, {684*4}, v244
    v_mul_u32_u24 v244, 320, v3
    v_lshrrev_b32 v245, 3, v2
    v_lshl_add_u32 v244, v245, 3, v244
    s_lshl_b32 s45, s28, 4
    s_add_u32 s45, s45, {L_XB}
    v_add3_u32 v5, v5, v244, s45
    s_mul_i32 s45, s28, {684*4}
    s_add_u32 s45, s45, {L_XB}
    v_mul_u32_u24 v244, 160, v2
    v_lshlrev_b32 v245, 4, v3
    v_add_u32 v246, 64, v245
    v_min_u32 v246, 96, v246
    v_add3_u32 v6, v244, v245, s45
    v_add3_u32 v7, v244, v246, s45
    v_sub_u32 v244, 2560, v244
    v_add3_u32 v236, v244, v245, s45
    v_add3_u32 v237, v244, v246, s45
    """)
    a("@stamp 2")
    a("s_waitcnt vmcnt(4)")
    a("@stamp 3")
    for k in range(8):
        w = WR + k // 2
        a(f"v_lshlrev_b32 v244, 16, v{w}" if k % 2 == 0 else f"v_and_b32 v244, 0xffff0000, v{w}")
        a(f"""v_mul_f32 v{Q+k}, v{CB1+k}, v244
        v_mul_f32 v{P0+k}, v{GB+k}, v{SB+k}
        v_mul_f32 v{P1+k}, v{GB+k}, v{CB1+k}""")
        if k == 0:
            a(f"""v_mul_f32 v246, v{SB+k}, v244
            v_mov_b32 v245, v{Q+k}""")
        else:
            a(f"""v_fmac_f32 v246, v{SB+k}, v244
            v_add_f32 v245, v245, v{Q+k}""")
    for sh in (8, 4, 2, 1):
        a(f"""v_add_f32_dpp v245, v245, v245 row_ror:{sh} row_mask:0xf bank_mask:0xf
        v_add_f32_dpp v246, v246, v246 row_ror:{sh} row_mask:0xf bank_mask:0xf""")
    a("""v_add_f32_dpp v245, v245, v245 row_bcast:15 row_mask:0xa bank_mask:0xf
    v_add_f32_dpp v246, v246, v246 row_bcast:15 row_mask:0xa bank_mask:0xf
    v_add_f32_dpp v245, v245, v245 row_bcast:31 row_mask:0xc bank_mask:0xf
    v_add_f32_dpp v246, v246, v246 row_bcast:31 row_mask:0xc bank_mask:0xf
    v_readlane_b32 s50, v245, 63
    v_readlane_b32 s51, v246, 63
    s_waitcnt lgkmcnt(0)
    @stamp 4
    s_barrier
    @stamp 5
    s_cmp_eq_u32 s28, 7
    s_cbranch_scc1 kB_w7skip""")
    def trread(tau):
        for ks in range(2):
            for h in range(2):
                r = AOP + 8*tau + 4*ks + 2*h
                a(f"ds_read_b64_tr_b16 v[{r}:{r+1}], v4 offset:{ks*29696 + h*14848 + 224*tau}")
    def t2(tau):
        for ks in range(2):
            r = AOP + 8*tau + 4*ks
            c = "0" if ks == 0 else f"v[{ACC+4*tau}:{ACC+4*tau+3}]"
            a(f"v_mfma_f32_16x16x32_bf16 v[{ACC+4*tau}:{ACC+4*tau+3}], v[{r}:{r+3}], v[{T2B+4*ks}:{T2B+4*ks+3}], {c}")
    for ks in range(2):
        a(f"ds_read_b128 v[{T2B+4*ks}:{T2B+4*ks+3}], v242 offset:{L_COEF+(8+ks)*1024}")
    trread(0); trread(1); trread(2)
    a("s_waitcnt lgkmcnt(8)"); t2(0); trread(3)
    a("s_waitcnt lgkmcnt(8)"); t2(1)
    for mu in range(2):
        a(f"ds_read_b128 v[{H1A+4*mu}:{H1A+4*mu+3}], v242 offset:{L_COEF+(10+mu)*1024}")
    a("s_waitcnt lgkmcnt(6)"); t2(2)
    a("s_waitcnt lgkmcnt(2)"); t2(3)
    for q in range(8):
        a(f"ds_read_b128 v[{H2B+4*q}:{H2B+4*q+3}], v242 offset:{L_COEF+q*1024}")
    for tau in range(4):
        for r in range(4):
            a(f"v_mul_f32 v{ACC+4*tau+r}, v{ACC+4*tau+r}, v{CA1+4*tau+r}")
    a(f"""s_cmp_lg_u32 s2, 0
    s_cbranch_scc1 kB_nosa2
    v_cmp_eq_u32 vcc, 0, v2
    v_mov_b32 v244, {f32(2048.0)}
    v_cndmask_b32 v244, 0, v244, vcc
    s_waitcnt vmcnt(0)""")
    for k in range(16):
        a(f"v_fmac_f32 v{ACC+k}, v{SA+k}, v244")
    a.label("kB_nosa2")
    for r0 in range(2):
        for k in range(2):
            a(f"""v_cvt_pk_bf16_f32 v{BOP+4*r0+k}, v{ACC+8*k+r0}, v{ACC+8*k+4+r0}
            v_cvt_pk_bf16_f32 v{BOP+4*r0+2+k}, v{ACC+8*k+r0+2}, v{ACC+8*k+4+r0+2}
            v_cvt_pk_bf16_f32 v{TMP+2*r0+k}, v{ACC+8*k+r0+2}, v{ACC+8*k+4+r0+2}""")
    for r0 in range(2):
        for k in range(2):
            a(f"v_mov_b32_dpp v{BOP+4*r0+2+k}, v{BOP+4*r0+k} row_ror:8 row_mask:0xf bank_mask:0x3")
    for r0 in range(2):
        for k in range(2):
            a(f"v_mov_b32_dpp v{BOP+4*r0+k}, v{TMP+2*r0+k} row_ror:8 row_mask:0xf bank_mask:0xc")
    a("s_waitcnt lgkmcnt(8)")
    A1 = AOP
    for r0 in range(2):
        for mu in range(2):
            d = A1 + 8*r0 + 4*mu
            a(f"v_mfma_f32_16x16x32_bf16 v[{d}:{d+3}], v[{H1A+4*mu}:{H1A+4*mu+3}], v[{BOP+4*r0}:{BOP+4*r0+3}], 0")
    GP = AOP + 16
    def tw(re, im, k, dst):
        a(f"""v_mul_f32 v244, v{re}, v{TWC+k}
        v_mul_f32 v245, v{im}, v{TWC+k}
        v_fmac_f32 v244, v{im}, v{TWS+k}
        v_fma_f32 v245, -v{re}, v{TWS+k}, v245
        v_cvt_pk_bf16_f32 v{dst}, v244, v245""")
    for r0 in range(2):
        tw(A1 + 8*r0, A1 + 8*r0 + 1, 8 + r0, GP + 8 + r0)
    for mu in range(2):
        for p in range(2):
            for r0 in range(2):
                d = A1 + 8*r0 + 4*mu + 2*p
                tw(d, d+1, 4*r0 + 2*mu + p, GP + 2*(2*mu+p) + r0)
            q = GP + 2*(2*mu+p)
            a(f"ds_write_b64 v5, v[{q}:{q+1}] offset:{(8*mu+p)*160}")
    a(f"""s_mov_b64 exec, 0xffff
    ds_write_b64 v5, v[{GP+8}:{GP+9}] offset:2560
    s_mov_b64 exec, -1
    s_branch kB_h2""")
    a.label("kB_w7skip")
    for q in range(8):
        a(f"ds_read_b128 v[{H2B+4*q}:{H2B+4*q+3}], v242 offset:{L_COEF+q*1024}")
    a.label("kB_h2")
    a("""s_waitcnt lgkmcnt(0)
    @stamp 6
    s_barrier
    @stamp 7""")
    A2 = ACC
    for pr, ks, ad in ((0, 0, 6), (0, 1, 7), (1, 0, 236), (1, 1, 237)):
        r = A2 + 8*pr + 4*ks
        a(f"ds_read_b128 v[{r}:{r+3}], v{ad}")
    Y = AOP
    for pr in range(2):
        for ks in range(2):
            a(f"s_waitcnt lgkmcnt({3 - 2*pr - ks})")
            for nu in range(2):
                d = Y + 8*pr + 4*nu
                c = "0" if ks == 0 else f"v[{d}:{d+3}]"
                b = H2B + 4*(4*pr + 2*nu + ks)
                r = A2 + 8*pr + 4*ks
                a(f"v_mfma_f32_16x16x32_bf16 v[{d}:{d+3}], v[{r}:{r+3}], v[{b}:{b+3}], {c}")
    XU = AOP + 16
    a("s_waitcnt vmcnt(0)")
    for row in range(2):
        for j in range(4):
            a(f"""v_lshlrev_b32 v{XU+8*row+2*j}, 16, v{XR+4*row+j}
            v_and_b32 v{XU+8*row+2*j+1}, 0xffff0000, v{XR+4*row+j}""")
    for row in range(2):
        for k in range(8):
            a(f"v_fma_f32 v{Y+8*row+k}, v{GA+k}, v{Y+8*row+k}, v{XU+8*row+k}")
    SS = 244
    for k in range(8):
        for row in range(2):
            y = Y + 8*row + k
            if k == 0:
                a(f"""v_mul_f32 v{SS+2+row}, v{y}, v{y}
                v_mul_f32 v{SS+4+row}, v{y}, v{Q+k}""")
            else:
                if k == 1: a(f"v_add_f32 v{SS+row}, v{y-1}, v{y}")
                else: a(f"v_add_f32 v{SS+row}, v{SS+row}, v{y}")
                a(f"""v_fmac_f32 v{SS+2+row}, v{y}, v{y}
                v_fmac_f32 v{SS+4+row}, v{y}, v{Q+k}""")
    for j in range(3):
        a(f"v_permlane32_swap_b32 v{SS+2*j}, v{SS+2*j+1}")
    for j in range(3):
        a(f"v_add_f32 v{SS+2*j}, v{SS+2*j}, v{SS+2*j+1}")
    fill = [f"v_add_f32 v{XU+8*row+k}, v{Y+8*row+k}, v{P0+k}" for row in range(2) for k in range(8)]
    for sh in (8, 4, 2, 1):
        for j in range(3):
            a(f"v_add_f32_dpp v{SS+2*j}, v{SS+2*j}, v{SS+2*j} row_ror:{sh} row_mask:0xf bank_mask:0xf")
        for _ in range(2): a(fill.pop())
    for j in range(3):
        a(f"v_add_f32_dpp v{SS+2*j}, v{SS+2*j}, v{SS+2*j} row_bcast:15 row_mask:0xa bank_mask:0xf")
    a(f"""v_mul_f32 v244, {f32(1/448)}, v244
    v_mul_f32 v246, {f32(1/448)}, v246
    v_fma_f32 v246, -v244, v244, v246
    v_max_f32 v246, 0, v246
    v_cvt_pk_bf16_f32 v245, v244, v246
    v_lshlrev_b32 v244, 16, v245
    v_and_b32 v246, 0xffff0000, v245
    v_add_f32 v246, {f32(1e-5)}, v246""")
    round_bf16(a, 246)
    a("v_sqrt_f32 v246, v246")
    a(fill.pop())
    round_bf16(a, 246)
    a("v_rcp_f32 v246, v246")
    a(f"""v_fma_f32 v248, -v244, s50, v248
    v_mul_f32 v245, -v244, v246            ; b = -m*rstd
    v_fma_f32 v248, v248, v246, s51        ; r
    v_mov_b32 v250, s36
    v_mov_b32 v251, s37
    v_ashrrev_i32 v249, 31, v248
    v_or_b32 v249, 0x80000000, v249
    v_xor_b32 v248, v248, v249
    v_and_b32 v248, 0xfffff800, v248
    v_min_u32 v248, 0xfffff000, v248
    v_readlane_b32 s52, v246, 16
    v_readlane_b32 s53, v245, 16
    v_readlane_b32 s54, v246, 48
    v_readlane_b32 s55, v245, 48
    v_readlane_b32 s56, v248, 16
    v_readlane_b32 s57, v248, 48
    s_or_b32 s56, s56, s36
    s_or_b32 s57, s57, s37
    s_cmp_eq_u32 s36, s37
    s_cselect_b32 s57, 0, s57
    s_max_u32 s56, s56, s57
    v_mov_b32 v250, s56
    s_lshl_b32 s58, s28, 2
    v_mov_b32 v251, s58
    ds_write_b32 v251, v250 offset:{L_KEY}
    """)
    while fill: a(fill.pop())
    v_b = (252, 253)
    a(f"""v_mov_b32 v252, s53
    v_mov_b32 v253, s55""")
    N2 = ACC
    OUTP = BOP
    for row in range(2):
        for k in range(8):
            a(f"v_fma_f32 v{N2+8*row+k}, v{Y+8*row+k}, s{52+2*row}, v{v_b[row]}")
    a("""s_waitcnt lgkmcnt(0)
    @stamp 8
    s_barrier
    @stamp 9
    v_mov_b32 v251, 0""")
    a(f"""ds_read_b128 v[244:247], v251 offset:{L_KEY}
    ds_read_b128 v[248:251], v251 offset:{L_KEY+16}""")
    for row in range(2):
        for k in range(8):
            a(f"v_fmac_f32 v{XU+8*row+k}, v{N2+8*row+k}, v{P1+k}")
        for j in range(4):
            a(f"v_cvt_pk_bf16_f32 v{OUTP+4*row+j}, v{XU+8*row+2*j}, v{XU+8*row+2*j+1}")
    a(f"""s_waitcnt lgkmcnt(0)
    v_max3_u32 v244, v244, v245, v246
    v_max3_u32 v248, v248, v249, v250
    v_max3_u32 v244, v244, v247, v251
    v_max_u32 v244, v244, v248
    v_readfirstlane_b32 s59, v244
    s_and_b32 s60, s59, 0x7ff
    s_mul_i32 s61, s2, 1792
    s_add_u32 s61, s61, {WS_CAND}
    s_lshl_b32 s62, s2, 2
    s_add_u32 s62, s62, {WS_KEY}
    @stamp 10
    """)
    for row in range(2):
        rs = 36 + row
        if row == 1:
            a(f"""s_cmp_eq_u32 s36, s37
            s_cbranch_scc1 kB_fin""")
        a(f"""s_cmp_eq_u32 s{rs}, s60
        s_cbranch_scc1 kB_pub{row}
        buffer_store_dwordx2 v[{OUTP+4*row}:{OUTP+4*row+1}], v240, s[20:23], s{41+row} offen
        buffer_store_dwordx2 v[{OUTP+4*row+2}:{OUTP+4*row+3}], v241, s[20:23], s{41+row} offen
        """)
        if row == 0: a("s_branch kB_row1")
        else: a("@end")
        a.label(f"kB_pub{row}")
        a(f"""v_mov_b32 v245, 0
        s_mov_b64 exec, 1
        buffer_store_dword v244, v245, s[12:15], s62 offen sc1
        s_mov_b64 exec, -1""")
        for k in range(8):
            a(f"v_fma_f32 v{Y+k}, v{N2+8*row+k}, v{CB1+k}, v{SB+k}")
        for j in range(4):
            a(f"""v_cvt_pk_bf16_f32 v{246+j}, v{Y+2*j}, v{Y+2*j+1}
            v_min_u32 v{246+j}, -2, v{246+j}
            v_min_u32 v{OUTP+4*row+j}, -2, v{OUTP+4*row+j}""")
        a(f"""buffer_store_dwordx2 v[246:247], v240, s[12:15], s61 offen sc1
        buffer_store_dwordx2 v[248:249], v241, s[12:15], s61 offen sc1
        buffer_store_dwordx2 v[{OUTP+4*row}:{OUTP+4*row+1}], v240, s[12:15], s61 offen offset:896 sc1
        buffer_store_dwordx2 v[{OUTP+4*row+2}:{OUTP+4*row+3}], v241, s[12:15], s61 offen offset:896 sc1""")
        if row == 0: a.label("kB_row1")
        else: a("@end")
    a.label("kB_mlp")
    a(f"""s_load_dwordx2 s[4:5], s[0:1], {KA_WG}
    s_load_dwordx2 s[6:7], s[0:1], {KA_WU}
    s_load_dwordx2 s[16:17], s[0:1], {KA_WD}
    s_load_dwordx2 s[18:19], s[0:1], {KA_WS}
    s_load_dwordx2 s[30:31], s[0:1], {KA_OUT}
    v_readfirstlane_b32 s28, v0
    v_and_b32 v1, 63, v0
    v_and_b32 v2, 15, v0
    v_bfe_u32 v3, v0, 4, 2
    v_lshlrev_b32 v4, 4, v1          ; lane*16
    s_lshr_b32 s28, s28, 6           ; wave
    s_sub_u32 s29, s2, {NCAND}         ; j
    v_lshrrev_b32 v5, 2, v1
    v_mul_u32_u24 v5, 3584, v5
    v_and_b32 v6, 3, v1
    v_lshl_add_u32 v5, v6, 4, v5
    s_and_b32 s32, s28, 3
    s_mul_i32 s33, s32, {7*16*3584}
    s_lshl_b32 s34, s29, 6
    s_add_u32 s33, s33, s34
    s_mul_i32 s34, s28, {7*1024}
    s_add_u32 s34, s34, {M_GATE}
    s_cmp_ge_u32 s28, 4
    s_waitcnt lgkmcnt(0)
    s_cselect_b32 s4, s6, s4
    s_cselect_b32 s5, s7, s5""")
    srd(a, 8, 4, 448 * 1792 * 2)
    srd(a, 20, 16, 1792 * 448 * 2)
    srd(a, 12, 18, WS_SIZE_USED)
    srd(a, 24, 30, S * D * 2)
    for jj in range(7):
        a(f"""s_mov_b32 m0, s34
        s_add_u32 s34, s34, 1024
        buffer_load_dwordx4 v5, s[8:11], s33 offen lds
        s_add_u32 s33, s33, {16*3584}""")
    a(f"""s_mul_i32 s33, s29, 28672
    s_lshl_b32 s34, s28, 10
    s_add_u32 s33, s33, s34
    s_add_u32 s34, s34, {M_DOWN}""")
    for jj in range(4):
        if jj == 3:
            a("""s_cmp_ge_u32 s28, 4
            s_cbranch_scc1 kB_mlp_dmadone""")
        a(f"""s_mov_b32 m0, s34
        s_add_u32 s34, s34, 8192
        buffer_load_dwordx4 v4, s[20:23], s33 offen lds
        s_add_u32 s33, s33, 8192""")
    a.label("kB_mlp_dmadone")
    a(f"""v_lshlrev_b32 v7, 3, v3
    s_lshl_b32 s35, s29, 5
    s_add_u32 s35, s35, {WS_MOD + 5*1792}
    buffer_load_dwordx2 v[8:9], v7, s[12:15], s35 offen
    v_mov_b32 v10, -1
    v_lshlrev_b32 v11, 2, v0
    @stamp 1
    s_waitcnt vmcnt(0)
    @stamp 2
    s_barrier
    s_cmp_ge_u32 s28, 4
    s_cbranch_scc1 kB_fin""")
    WGU, WDN = 16, 72
    a(f"""v_bfe_u32 v12, v0, 2, 2
    v_lshl_add_u32 v12, v3, 3, v12   ; 8G+rho
    v_lshlrev_b32 v13, 6, v12
    v_bfe_u32 v14, v0, 1, 1
    v_mul_u32_u24 v14, {M_UP}, v14
    v_and_b32 v15, 1, v0
    v_lshl_add_u32 v14, v15, 3, v14
    s_lshl_b32 s36, s28, 4
    s_add_u32 s36, s36, {M_GATE}
    v_add3_u32 v13, v13, v14, s36
    v_mul_u32_u24 v12, 896, v12
    v_and_b32 v14, 3, v0
    v_lshl_add_u32 v12, v14, 3, v12
    s_mul_i32 s36, s28, 224
    s_add_u32 s36, s36, {M_DOWN}
    v_add_u32 v12, s36, v12""")
    cnt = 0
    for ks in range(14):
        for h in range(2):
            r = WGU + 4*ks + 2*h
            a(f"ds_read_b64_tr_b16 v[{r}:{r+1}], v13 offset:{ks*2048 + h*256}")
        if ks % 4 == 3: a("s_waitcnt lgkmcnt(0)")
    a("s_waitcnt lgkmcnt(0)")
    for T in range(7):
        for h in range(2):
            r = WDN + 4*T + 2*h
            a(f"ds_read_b64_tr_b16 v[{r}:{r+1}], v12 offset:{T*32 + h*3584}")
    a(f"""s_mul_i32 s36, s28, 896
    s_add_u32 s36, s36, {M_H}
    v_add_u32 v100, s36, v4
    v_lshlrev_b32 v101, 4, v3
    v_add_u32 v101, s36, v101
    v_and_b32 v102, 1, v3
    v_lshlrev_b32 v102, 3, v102
    v_lshrrev_b32 v103, 1, v3
    v_lshl_add_u32 v102, v103, 2, v102
    s_lshl_b32 s36, s28, 4
    v_add_u32 v102, s36, v102
    v_lshlrev_b32 v103, 4, v3
    v_lshrrev_b32 v104, 1, v3
    v_mul_u32_u24 v104, 1792, v104
    v_and_b32 v105, 1, v3
    v_lshl_add_u32 v104, v105, 4, v104
    s_mul_i32 s37, s28, {14*1792}
    s_lshl_b32 s36, s29, 5
    s_add_u32 s37, s37, s36
    s_add_u32 s37, s37, {WS_PART}
    s_mov_b32 s38, {WS_KEY}
    s_mov_b32 s39, {SPIN}
    v_cmp_eq_u32 s[40:41], 32, v1
    s_waitcnt lgkmcnt(0)
    s_mov_b32 exec_lo, 0xffffffff
    s_mov_b32 exec_hi, 0x1""")
    a("@stamp 3")
    a.label("kB_pollkey")
    a(f"""buffer_load_dwordx4 v[108:111], v4, s[12:15], s38 offen sc1
    s_sub_u32 s39, s39, 1
    s_cbranch_scc1 kB_keydone
    s_waitcnt vmcnt(0)
    v_cndmask_b32 v109, v109, 0, s[40:41]
    v_cndmask_b32 v110, v110, 0, s[40:41]
    v_cndmask_b32 v111, v111, 0, s[40:41]
    v_max3_u32 v112, v108, v109, v110
    v_max_u32 v112, v112, v111
    v_cmp_eq_u32 vcc, -1, v112
    s_cbranch_vccz kB_keydone
    s_sleep 1
    s_branch kB_pollkey""")
    a.label("kB_keydone")
    a("""s_waitcnt vmcnt(0)
    @stamp 4
    s_mov_b64 exec, -1
    v_cmp_lt_u32 vcc, 32, v1
    v_cndmask_b32 v112, v112, 0, vcc
    v_mov_b32 v113, v112""")
    for sh in (8, 4, 2, 1):
        a(f"v_max_u32_dpp v113, v113, v113 row_ror:{sh} row_mask:0xf bank_mask:0xf")
    a(f"""v_readlane_b32 s42, v113, 0
    v_readlane_b32 s43, v113, 16
    v_readlane_b32 s44, v113, 32
    s_max_u32 s42, s42, s43
    s_max_u32 s42, s42, s44
    v_cmp_eq_u32 vcc, s42, v112
    s_ff1_i32_b64 s43, vcc           ; lane
    v_cmp_eq_u32 vcc, s42, v109
    v_cndmask_b32 v113, 0, 1, vcc
    v_cmp_eq_u32 vcc, s42, v110
    v_cndmask_b32 v113, v113, 2, vcc
    v_cmp_eq_u32 vcc, s42, v111
    v_cndmask_b32 v113, v113, 3, vcc
    s_and_b32 s43, s43, 63
    v_readlane_b32 s44, v113, s43
    s_lshl_b32 s43, s43, 2
    s_add_u32 s43, s43, s44          ; slot
    s_min_u32 s43, s43, {NCAND-1}
    s_mul_i32 s43, s43, 1792
    s_add_u32 s43, s43, {WS_CAND}
    s_and_b32 s45, s42, 0x7ff
    s_lshl_b32 s46, s29, 4
    s_add_u32 s46, s46, s43
    v_lshlrev_b32 v106, 2, v3
    s_mov_b32 s39, {SPIN}
    s_mov_b32 exec_lo, 0xffffffff
    s_mov_b32 exec_hi, 0xffffff""")
    a.label("kB_pollh")
    a(f"""buffer_load_dwordx4 v[108:111], v4, s[12:15], s43 offen sc1
    buffer_load_dword v107, v106, s[12:15], s46 offen offset:896 sc1
    s_sub_u32 s39, s39, 1
    s_cbranch_scc1 kB_hdone
    s_waitcnt vmcnt(0)
    v_max3_u32 v112, v108, v109, v110
    v_max3_u32 v112, v112, v111, v107
    v_cmp_eq_u32 vcc, -1, v112
    s_cbranch_vccnz kB_pollh""")
    a.label("kB_hdone")
    a("""s_waitcnt vmcnt(0)
    @stamp 5
    ds_write_b128 v100, v[108:111]
    s_mov_b64 exec, -1
    s_waitcnt lgkmcnt(0)""")
    HB = 116
    for ks in range(14):
        a(f"ds_read_b128 v[{HB+4*ks}:{HB+4*ks+3}], v101 offset:{64*ks}")
    a(f"""s_and_b32 s47, s42, 0xfffff800
    s_ashr_i32 s48, s47, 31
    s_not_b32 s48, s48
    s_or_b32 s48, s48, 0x80000000
    s_xor_b32 s47, s47, s48
    v_mov_b32 v114, s47""")
    round_bf16(a, 114)
    a(f"""v_mul_f32 v114, {f32(-math.log2(math.e))}, v114
    v_exp_f32 v114, v114
    v_add_f32 v114, 1.0, v114
    v_rcp_f32 v114, v114""")
    round_bf16(a, 114)
    for ks in range(14):
        a(f"s_waitcnt lgkmcnt({13-ks})")
        c = "0" if ks == 0 else "v[108:111]"
        a(f"v_mfma_f32_16x16x32_bf16 v[108:111], v[{WGU+4*ks}:{WGU+4*ks+3}], v[{HB+4*ks}:{HB+4*ks+3}], {c}")
    a(f"""v_permlane32_swap_b32 v108, v110
    v_permlane32_swap_b32 v109, v111
    v_cvt_pk_bf16_f32 v108, v108, v109     ; g pair
    v_cvt_pk_bf16_f32 v110, v110, v111     ; u pair
    v_and_b32 v109, 0xffff0000, v108
    v_lshlrev_b32 v108, 16, v108
    v_and_b32 v111, 0xffff0000, v110
    v_lshlrev_b32 v110, 16, v110
    v_mul_f32 v112, {f32(-math.log2(math.e))}, v108
    v_mul_f32 v113, {f32(-math.log2(math.e))}, v109
    v_exp_f32 v112, v112
    v_exp_f32 v113, v113
    v_add_f32 v112, 1.0, v112
    v_add_f32 v113, 1.0, v113
    v_rcp_f32 v112, v112
    v_rcp_f32 v113, v113
    v_mul_f32 v108, v108, v112
    v_mul_f32 v109, v109, v113
    v_cvt_pk_bf16_f32 v108, v108, v109
    v_and_b32 v109, 0xffff0000, v108
    v_lshlrev_b32 v108, 16, v108
    v_mul_f32 v108, v108, v110
    v_mul_f32 v109, v109, v111
    v_cvt_pk_bf16_f32 v108, v108, v109
    ds_write_b32 v102, v108 offset:{M_GU}
    s_waitcnt lgkmcnt(0)
    @stamp 6
    s_barrier
    ds_read_b128 v[108:111], v103 offset:{M_GU}
    s_waitcnt lgkmcnt(0)""")
    for T in range(7):
        a(f"v_mfma_f32_16x16x32_bf16 v[{HB+4*T}:{HB+4*T+3}], v[{WDN+4*T}:{WDN+4*T+3}], v[108:111], 0")
    a("s_mov_b32 exec_lo, 0x10001\n s_mov_b32 exec_hi, 0x10001")
    for T in range(7):
        a(f"""buffer_store_dwordx4 v[{HB+4*T}:{HB+4*T+3}], v104, s[12:15], s37 offen sc1
        s_add_u32 s37, s37, 3584""")
    a(f"""s_mov_b32 exec_lo, 0xffffffff
    s_mov_b32 exec_hi, 0xffffff
    s_mov_b32 s39, {SPIN}
    @stamp 7
    s_cmp_lg_u32 s28, 0
    s_cbranch_scc1 kB_copyout
    s_mul_i32 s37, s29, 1792
    s_add_u32 s37, s37, {WS_PART}
    v_lshlrev_b32 v105, 5, v1""")
    a.label("kB_pollp")
    a(f"""buffer_load_dwordx4 v[116:119], v105, s[12:15], s37 offen sc1
    buffer_load_dwordx4 v[120:123], v105, s[12:15], s37 offen offset:16 sc1
    s_sub_u32 s39, s39, 1
    s_cbranch_scc1 kB_pdone
    s_waitcnt vmcnt(0)
    v_max3_u32 v112, v116, v117, v118
    v_max3_u32 v112, v112, v119, v120
    v_max3_u32 v112, v112, v121, v122
    v_max_u32 v112, v112, v123
    v_cmp_eq_u32 vcc, -1, v112
    s_cbranch_vccnz kB_pollp""")
    a.label("kB_pdone")
    a("""s_waitcnt vmcnt(0)
    @stamp 8
    s_mov_b32 exec_lo, 0x0
    s_mov_b32 exec_hi, 0xff000000""")
    for i in range(8): a(f"v_mov_b32 v{116+i}, 0")
    a("s_mov_b64 exec, -1")
    for i in range(4): a(f"v_permlane32_swap_b32 v{116+i}, v{120+i}")
    for i in range(4): a(f"v_add_f32 v{116+i}, v{116+i}, v{120+i}")
    for i in range(2): a(f"v_permlane16_swap_b32 v{116+i}, v{118+i}")
    for i in range(2): a(f"v_add_f32 v{116+i}, v{116+i}, v{118+i}")
    for sh in (8, 4, 2, 1):
        for i in range(2):
            a(f"v_add_f32_dpp v{116+i}, v{116+i}, v{116+i} row_ror:{sh} row_mask:0xf bank_mask:0xf")
    a(f"""v_cvt_pk_bf16_f32 v116, v116, v117
    v_and_b32 v117, 0xffff0000, v116
    v_lshlrev_b32 v116, 16, v116
    v_mul_f32 v116, v116, v114
    v_mul_f32 v117, v117, v114
    v_cvt_pk_bf16_f32 v116, v116, v117
    v_and_b32 v117, 0xffff0000, v116
    v_lshlrev_b32 v116, 16, v116
    v_lshlrev_b32 v118, 16, v107
    v_and_b32 v119, 0xffff0000, v107
    v_fmac_f32 v118, v116, v8
    v_fmac_f32 v119, v117, v9
    v_cvt_pk_bf16_f32 v118, v118, v119
    s_mul_i32 s37, s45, 896
    s_lshl_b32 s36, s29, 4
    s_add_u32 s37, s37, s36
    s_mov_b32 exec_lo, 0x10001
    s_mov_b32 exec_hi, 0x10001
    buffer_store_dword v118, v106, s[24:27], s37 offen
    @end""")
    a.label("kB_copyout")
    a(f"""s_sub_u32 s36, s28, 1
    s_mul_i32 s36, s36, {NMLP}
    s_add_u32 s36, s36, s29          ; slot
    s_cmp_ge_u32 s36, {NCAND}
    s_cbranch_scc1 kB_fin
    s_lshl_b32 s37, s36, 2
    s_add_u32 s37, s37, {WS_KEY}
    s_mul_i32 s36, s36, 1792
    s_add_u32 s36, s36, {WS_CAND}
    v_mov_b32 v105, 0""")
    a.label("kB_pollc")
    a(f"""buffer_load_dword v112, v105, s[12:15], s37 offen sc1
    buffer_load_dwordx4 v[116:119], v4, s[12:15], s36 offen offset:896 sc1
    s_sub_u32 s39, s39, 1
    s_cbranch_scc1 kB_cdone
    s_waitcnt vmcnt(0)
    v_max3_u32 v113, v116, v117, v118
    v_max3_u32 v113, v113, v119, v112
    v_cmp_eq_u32 vcc, -1, v113
    s_cbranch_vccnz kB_pollc""")
    a.label("kB_cdone")
    a("""s_waitcnt vmcnt(0)
    v_readfirstlane_b32 s36, v112
    s_and_b32 s36, s36, 0x7ff
    s_cmp_eq_u32 s36, s45
    s_cbranch_scc1 kB_fin
    s_mul_i32 s36, s36, 896
    buffer_store_dwordx4 v[116:119], v4, s[24:27], s36 offen""")
    a.label("kB_fin")
    a("@end")
    a.label("kB_end")
    a("s_endpgm")
    return dict(grid=NCAND + NMLP, block=512, lds=L_END, vgpr=256, sgpr=96)
```

```python
import sys, math, struct
from asmlib import Asm

NAME = "adaLN_cond__spectral_fnet__moe_arch_mod__prompt"
S, D = 2048, 448
KA_X, KA_WR, KA_WG, KA_WU, KA_WD, KA_C, KA_WMOD, KA_OUT, KA_DBG, KA_WS = 0, 48, 56, 64, 72, 80, 88, 96, 104, 112
WS_A = 0
WS_MOD = 0x1C0000
WS_KEY = 0x1C3000
WS_CAND = 0x1C4000
NCAND = 129
WS_PART = WS_CAND + NCAND * 1792
NMLP = 56
WS_END = WS_PART + NMLP * 1792
WS_SIZE_USED = 0x400000
assert WS_END <= WS_KEY + 224 * 1536 <= WS_SIZE_USED

def f32(x):
    return "0x%08x" % struct.unpack("<I", struct.pack("<f", x))[0]

def srd(a, dst, base, nbytes):
    a(f"""s_mov_b32 s{dst}, s{base}
    s_and_b32 s{dst+1}, s{base+1}, 0xffff
    s_mov_b32 s{dst+2}, {nbytes}
    s_mov_b32 s{dst+3}, 0x00020000""")

def round_bf16(a, v, tmp=None):
    a(f"v_cvt_pk_bf16_f32 v{v}, v{v}, v{v}")
    a(f"v_lshlrev_b32 v{v}, 16, v{v}")

def kernel_A(a, opt):
    NMAIN = 224; NMOD = 84
    a.label("kA_kernel")
    a(f"""s_cmp_ge_u32 s2, {NMAIN+NMOD}
    s_cbranch_scc1 kA_end
    @init""")
    if opt.get("pf"):
        a("s_getpc_b64 s[40:41]")
        a.label("kA_pc")
        a(f"""v_lshlrev_b32 v78, 7, v0
        v_cmp_gt_u32 vcc, kB_end-kA_pc, v78
        s_and_saveexec_b64 s[42:43], vcc
        s_cbranch_execz kA_nopf
        global_load_dword v79, v78, s[40:41]""")
        a.label("kA_nopf")
        a("s_mov_b64 exec, s[42:43]")
    a(f"""s_cmp_ge_u32 s2, {NMAIN}
    s_cbranch_scc1 kA_mod
    s_load_dwordx2 s[4:5], s[0:1], {KA_X}
    s_load_dwordx2 s[6:7], s[0:1], {KA_WS}
    s_lshr_b32 s20, s2, 5            ; q = chunk
    s_and_b32 s21, s2, 31            ; s2idx
    v_lshrrev_b32 v1, 3, v0          ; s1
    v_and_b32 v2, 7, v0              ; u
    s_movk_i32 s22, 28672
    v_mul_lo_u32 v3, v1, s22
    v_lshl_add_u32 v3, v2, 4, v3
    s_mul_i32 s23, s21, 896          ; s2*896
    """)
    for jj in range(7):
        a(f"""s_add_u32 s{24+jj}, s20, {jj}
        s_cmp_ge_u32 s{24+jj}, 7
        s_cselect_b32 s31, 7, 0
        s_sub_u32 s{24+jj}, s{24+jj}, s31
        s_lshl_b32 s{24+jj}, s{24+jj}, 7
        s_add_u32 s{24+jj}, s{24+jj}, s23""")
    a("s_waitcnt lgkmcnt(0)")
    srd(a, 8, 4, S * D * 2)
    srd(a, 12, 6, WS_SIZE_USED)
    XV = 8
    for jj in range(7):
        a(f"buffer_load_dwordx4 v[{XV+4*jj}:{XV+4*jj+3}], v3, s[8:11], s{24+jj} offen")
    a("@stamp 1")
    a(f"""v_and_b32 v4, 15, v0             ; n
    v_bfe_u32 v5, v0, 4, 2           ; G
    v_bfe_u32 v6, v0, 6, 2           ; nu
    v_lshrrev_b32 v7, 8, v0          ; eta
    v_lshl_add_u32 v45, v6, 4, v4    ; j = 16nu+n
    v_lshrrev_b32 v46, 1, v45        ; g
    v_and_b32 v47, 1, v45            ; ri
    v_cvt_f32_u32 v48, v46
    v_cvt_f32_u32 v49, v47
    v_mul_f32 v48, {f32(1/64)}, v48     ; g/64
    v_mul_f32 v49, 0.25, v49         ; phase
    v_cmp_eq_u32 vcc, 1, v45
    v_cndmask_b32 v48, v48, 0.5, vcc    ; j==1 -> g_eff=32
    v_cndmask_b32 v49, v49, 0, vcc
    v_lshlrev_b32 v50, 2, v5
    v_cvt_f32_u32 v50, v50           ; 4G
    v_fma_f32 v49, v48, v50, v49     ; angle at s1 = 4G
    """.replace("0.25", f32(0.25)))
    CB = 52
    for ks in range(2):
        for h in range(2):
            for rp in range(2):
                s1a = 32*ks + 16*h + 2*rp
                a(f"""v_fmamk_f32 v60, v48, {f32(s1a)}, v49
                v_fmamk_f32 v61, v48, {f32(s1a+1)}, v49
                v_cos_f32 v60, v60
                v_cos_f32 v61, v61
                v_cvt_pk_bf16_f32 v{CB+4*ks+2*h+rp}, v60, v61""")
    a(f"""v_mul_u32_u24 v62, 160, v1
    v_lshrrev_b32 v63, 2, v2
    v_lshl_add_u32 v62, v63, 6, v62
    v_and_b32 v63, 3, v2
    v_lshl_add_u32 v62, v63, 3, v62
    v_bfe_u32 v63, v0, 2, 2          ; rho
    v_lshl_add_u32 v63, v5, 2, v63   ; 4G+rho
    v_mul_u32_u24 v63, 160, v63
    v_and_b32 v64, 3, v0             ; cc
    v_lshl_add_u32 v63, v64, 3, v63
    v_lshl_add_u32 v63, v7, 6, v63
    v_lshl_add_u32 v64, v46, 6, v47
    v_mul_u32_u24 v64, 896, v64
    v_lshl_add_u32 v64, v7, 6, v64
    v_lshl_add_u32 v64, v5, 4, v64
    s_lshl_b32 s33, s23, 1
    s_lshl_b32 s36, s20, 7
    s_add_u32 s33, s33, s36
    s_mov_b32 s37, 0x3f803f80
    v_mov_b32 v65, 0
    v_mov_b32 v66, 0
    v_mov_b32 v67, 0
    v_mov_b32 v68, 0
    """)
    a("@stamp 2")
    for jj in range(7):
        a(f"s_waitcnt vmcnt({6-jj+1})" if False else f"s_waitcnt vmcnt({max(6-jj,0)})")
        for k in range(4):
            r = XV + 4*jj + k
            a(f"v_dot2c_f32_bf16 v{65+(k&1)}, s37, v{r}")
            a(f"v_dot2c_f32_bf16 v{67+(k&1)}, v{r}, v{r}")
    a("""@stamp 3
    v_add_f32 v65, v65, v66
    v_add_f32 v67, v67, v68
    v_add_f32_dpp v65, v65, v65 quad_perm:[1,0,3,2] row_mask:0xf bank_mask:0xf
    v_add_f32_dpp v67, v67, v67 quad_perm:[1,0,3,2] row_mask:0xf bank_mask:0xf
    v_add_f32_dpp v65, v65, v65 quad_perm:[2,3,0,1] row_mask:0xf bank_mask:0xf
    v_add_f32_dpp v67, v67, v67 quad_perm:[2,3,0,1] row_mask:0xf bank_mask:0xf
    v_add_f32_dpp v65, v65, v65 row_half_mirror row_mask:0xf bank_mask:0xf
    v_add_f32_dpp v67, v67, v67 row_half_mirror row_mask:0xf bank_mask:0xf
    """)
    a(f"""v_mul_f32 v65, {f32(1/448)}, v65       ; mean
    v_mul_f32 v67, {f32(1/448)}, v67       ; E[x^2]
    v_fma_f32 v67, -v65, v65, v67    ; var
    v_max_f32 v67, 0, v67
    v_cvt_pk_bf16_f32 v66, v65, v67
    v_lshlrev_b32 v65, 16, v66
    v_and_b32 v67, 0xffff0000, v66
    v_add_f32 v67, {f32(1e-5)}, v67""")
    round_bf16(a, 67)
    a("v_sqrt_f32 v67, v67")
    round_bf16(a, 67)
    a("""v_rcp_f32 v67, v67
    v_mul_f32 v65, v65, v67
    """)
    for k in range(4):
        a(f"""v_lshlrev_b32 v74, 16, v{XV+k}
        v_and_b32 v75, 0xffff0000, v{XV+k}
        v_fma_f32 v74, v74, v67, -v65
        v_fma_f32 v75, v75, v67, -v65
        v_cvt_pk_bf16_f32 v{70+k}, v74, v75""")
    a("""ds_write2_b64 v62, v[70:71], v[72:73] offset0:0 offset1:4
    s_waitcnt lgkmcnt(0)
    @stamp 4
    s_barrier
    @stamp 5""")
    AO = 8
    for mu in range(2):
        for ks in range(2):
            for h in range(2):
                r = AO + 8*mu + 4*ks + 2*h
                a(f"ds_read_b64_tr_b16 v[{r}:{r+1}], v63 offset:{ks*5120 + h*2560 + 32*mu}")
    for mu in range(2):
        for ks in range(2):
            a(f"s_waitcnt lgkmcnt({6 - 4*mu - 2*ks})")
            r = AO + 8*mu + 4*ks
            c = "0" if ks == 0 else f"v[{24+4*mu}:{27+4*mu}]"
            a(f"v_mfma_f32_16x16x32_bf16 v[{24+4*mu}:{27+4*mu}], v[{r}:{r+3}], v[{CB+4*ks}:{CB+4*ks+3}], {c}")
    a(f"""v_cvt_pk_bf16_f32 v32, v24, v25
    v_cvt_pk_bf16_f32 v33, v26, v27
    v_cvt_pk_bf16_f32 v34, v28, v29
    v_cvt_pk_bf16_f32 v35, v30, v31
    buffer_store_dwordx4 v[32:35], v64, s[12:15], s33 offen
    v_mov_b32 v40, -1
    v_mov_b32 v41, -1
    v_mov_b32 v42, -1
    v_mov_b32 v43, -1
    v_lshlrev_b32 v44, 4, v0
    s_mul_i32 s32, s2, 1536
    s_add_u32 s32, s32, {WS_KEY}
    v_cmp_gt_u32 vcc, 96, v0
    s_and_saveexec_b64 s[34:35], vcc
    @stamp 6
    s_cbranch_execz kA_fin
    buffer_store_dwordx4 v[40:43], v44, s[12:15], s32 offen
    s_branch kA_fin""")
    a.label("kA_mod")
    a(f"""v_readfirstlane_b32 s20, v0
    s_load_dwordx2 s[4:5], s[0:1], {KA_WMOD}
    s_load_dwordx2 s[6:7], s[0:1], {KA_WS}
    s_load_dwordx2 s[16:17], s[0:1], {KA_C}
    s_cmp_ge_u32 s20, 256
    s_cbranch_scc1 kA_end
    s_sub_u32 s21, s2, {NMAIN}
    v_lshrrev_b32 v1, 2, v0
    v_and_b32 v2, 3, v0
    s_movk_i32 s22, 5376
    v_mul_lo_u32 v3, v1, s22
    v_lshl_add_u32 v3, v2, 4, v3
    v_lshlrev_b32 v4, 1, v1          ; c offset
    s_lshl_b32 s23, s21, 6
    s_waitcnt lgkmcnt(0)""")
    srd(a, 8, 4, 448 * 2688 * 2)
    srd(a, 12, 6, WS_SIZE_USED)
    srd(a, 24, 16, 896)
    for jj in range(7):
        a(f"buffer_load_ushort v{40+jj}, v4, s[24:27], 0 offen offset:{128*jj}")
    for jj in range(7):
        a(f"""s_add_u32 s28, s23, {jj*64*5376}
        buffer_load_dwordx4 v[{8+4*jj}:{11+4*jj}], v3, s[8:11], s28 offen""")
    a("@stamp 1\ns_waitcnt vmcnt(7)\n@stamp 2")
    for jj in range(7):
        v = 40 + jj
        a(f"""v_lshlrev_b32 v{v}, 16, v{v}
        v_mul_f32 v48, {f32(-math.log2(math.e))}, v{v}
        v_exp_f32 v48, v48
        v_add_f32 v48, 1.0, v48
        v_rcp_f32 v48, v48
        v_mul_f32 v{v}, v{v}, v48""")
        round_bf16(a, v)
    for jj in range(7):
        a(f"s_waitcnt vmcnt({6-jj})")
        for k in range(4):
            r = 8 + 4*jj + k
            op = "v_mul_f32" if jj == 0 else "v_fmac_f32"
            a(f"""v_lshlrev_b32 v48, 16, v{r}
            v_and_b32 v49, 0xffff0000, v{r}
            {op} v{50+2*k}, v48, v{40+jj}
            {op} v{51+2*k}, v49, v{40+jj}""")
    a("@stamp 3")
    for i in range(4):
        a(f"v_permlane32_swap_b32 v{50+i}, v{54+i}")
    for i in range(4):
        a(f"v_add_f32 v{50+i}, v{50+i}, v{54+i}")
    for i in range(2):
        a(f"v_permlane16_swap_b32 v{50+i}, v{52+i}")
    for i in range(2):
        a(f"v_add_f32 v{50+i}, v{50+i}, v{52+i}")
    for sh in (8, 4):
        for i in range(2):
            a(f"v_add_f32_dpp v{50+i}, v{50+i}, v{50+i} row_ror:{sh} row_mask:0xf bank_mask:0xf")
    a(f"""v_lshrrev_b32 v52, 6, v0
    v_lshlrev_b32 v52, 7, v52        ; wave*128
    v_lshl_add_u32 v52, v2, 5, v52   ; + u*32
    v_bfe_u32 v53, v0, 4, 2
    v_lshl_add_u32 v52, v53, 3, v52
    ds_write_b64 v52, v[50:51]
    s_waitcnt lgkmcnt(0)
    s_barrier
    s_cmp_ge_u32 s20, 64
    s_cbranch_scc1 kA_fin
    v_lshlrev_b32 v52, 2, v0
    ds_read_b32 v54, v52
    ds_read_b32 v55, v52 offset:128
    ds_read_b32 v56, v52 offset:256
    ds_read_b32 v57, v52 offset:384
    s_mul_i32 s24, s21, 4682
    s_lshr_b32 s24, s24, 16
    s_cmp_eq_u32 s24, 1
    s_cselect_b32 s25, 1.0, 0
    s_cmp_eq_u32 s24, 4
    s_cselect_b32 s25, 1.0, s25
    s_lshl_b32 s26, s21, 7
    s_add_u32 s26, s26, {WS_MOD}
    s_waitcnt lgkmcnt(0)
    v_add_f32 v54, v54, v55
    v_add_f32 v56, v56, v57
    v_add_f32 v54, v54, v56""")
    round_bf16(a, 54)
    a("v_add_f32 v54, s25, v54")
    round_bf16(a, 54)
    a("""v_cmp_gt_u32 vcc, 32, v0
    s_and_saveexec_b64 s[34:35], vcc
    buffer_store_dword v54, v52, s[12:15], s26 offen""")
    a.label("kA_fin")
    a("@end")
    a.label("kA_end")
    a("s_endpgm")
    return dict(grid=NMAIN + NMOD, block=512, lds=10240, vgpr=80, sgpr=96)

from genB import kernel_B

def build(opt):
    hdr = open("cdna_kernels/%s.s.ref" % NAME).read().split("; Override launch")[0]
    ks = []
    body = ""
    for nm, fn in (("kA_kernel", kernel_A), ("kB_kernel", kernel_B)):
        if opt.get("only") and nm not in opt["only"]: continue
        a = Asm(diag=bool(opt.get('diag')), dbg_base=(0x300000 if nm == 'kA_kernel' else 0x340000))
        info = fn(a, opt)
        ks.append((nm, info))
        body += f".globl {nm}\n.p2align 8\n.type {nm},@function\n" + a.text()
    out = hdr
    if "E" in opt.get("list", ""):
        ks.append(("kE_kernel", dict(grid=256, block=64, lds=0, vgpr=8, sgpr=16)))
        body += ".globl kE_kernel\n.p2align 8\n.type kE_kernel,@function\nkE_kernel:\n    s_endpgm\n"
    kd = dict(ks)
    for ch in opt.get("list", "AB"):
        nm = f"k{ch}_kernel"; info = kd[nm]
        out += f"; @launch kernel={nm} grid=({info['grid']},1,1) block=({info['block']},1,1) lds={info['lds']}\n"
    out += '.amdgcn_target "amdgcn-amd-amdhsa--gfx950"\n.text\n' + body
    out += '.section .rodata,"a"\n'
    for nm, info in ks:
        v = info['vgpr']
        out += f""".p2align 6
.amdhsa_kernel {nm}
  .amdhsa_next_free_vgpr {v}
  .amdhsa_next_free_sgpr {info['sgpr']}
  .amdhsa_accum_offset {(v+3)//4*4}
  .amdhsa_group_segment_fixed_size 0
  .amdhsa_kernarg_size 120
  .amdhsa_user_sgpr_count 2
  .amdhsa_user_sgpr_kernarg_segment_ptr 1
  .amdhsa_system_sgpr_workgroup_id_x 1
  .amdhsa_float_denorm_mode_32 3
  .amdhsa_float_denorm_mode_16_64 3
.end_amdhsa_kernel
"""
    return out

if __name__ == "__main__":
    opt = {}
    outp = sys.argv[1] if len(sys.argv) > 1 else "cdna_kernels/%s.s" % NAME
    for kv in sys.argv[2:]:
        k, v = kv.split("=")
        opt[k] = v
    open(outp, "w").write(build(opt))
    print("wrote", outp)
```
